```python
import torch

def _softmax(x, axis=-1):
    return torch.softmax(x, dim=axis)
def _gelu(x):
    return torch.nn.functional.gelu(x, approximate="tanh")
def _silu(x):
    return torch.nn.functional.silu(x)
def _sigmoid(x):
    return torch.sigmoid(x)
def _layernorm(x, axis=-1, eps=1e-5):
    m = x.mean(dim=axis, keepdim=True)
    v = x.var(dim=axis, keepdim=True, unbiased=False)
    return (x - m) / torch.sqrt(v + eps)
def _scatter_add(tgt, idx, src, axis=0):
    return tgt.clone().index_add_(axis, idx, src)
def _segment_sum(src, seg, n):
    out = torch.zeros((n,) + src.shape[1:], dtype=src.dtype)
    return out.index_add_(0, seg, src)
def _pad(x, pw):
    flat = tuple(v for pair in reversed(pw) for v in pair)
    return torch.nn.functional.pad(x, flat)

kernel_name = 'parallel_sum__sliding_local_dilated__dense_activation_silu__prompt'

def setup_inputs():

    _w = (lambda a: (lambda t: t.to(torch.bfloat16) if t.is_floating_point() else t)(torch.as_tensor(a)))
    def _A_setup():
        B, S, D = 1, 2048, 512
        return {
            "x": _w((lambda *s: torch.randn(*s, dtype=torch.bfloat16) * 0.05)(B, S, D)),
            "wqkv": _w((lambda *s: torch.randn(*s, dtype=torch.bfloat16) * 0.05)(D, 3 * D)),
            "wo": _w((lambda *s: torch.randn(*s, dtype=torch.bfloat16) * 0.05)(D, D)),
        }
    _A_in = _A_setup()

    def _B_setup():
        B, S, D, F = 1, 2048, 512, 1792
        return {
            "x": _w((lambda *s: torch.randn(*s, dtype=torch.bfloat16) * 0.05)(B, S, D)),
            "w1": _w((lambda *s: torch.randn(*s, dtype=torch.bfloat16) * 0.8)(D, F) * (D ** -0.5)),
            "w2": _w((lambda *s: torch.randn(*s, dtype=torch.bfloat16) * 0.8)(F, D) * (F ** -0.5)),
        }
    _B_in = _B_setup()

    return {
        "A_x": _A_in["x"],
        "A_wqkv": _A_in["wqkv"],
        "A_wo": _A_in["wo"],
        "B_x": _B_in["x"],
        "B_w1": _B_in["w1"],
        "B_w2": _B_in["w2"],
    }

def reference(A_x, A_wqkv, A_wo, B_x, B_w1, B_w2):
    def _A_ref(x, wqkv, wo):
        B, S, D = x.shape
        H = 32; Dh = D // H
        W, dil = 8, 2
        qkv = (lambda x, *d: x.permute(*d))((x @ wqkv).reshape(B, S, 3, H, Dh), 2, 0, 3, 1, 4)
        q, k, v = qkv[0], qkv[1], qkv[2]
        scale = Dh ** -0.5
        pos = torch.arange(S)
        off = torch.arange(W) * dil
        idx = pos[:, None] - off[None, :]
        mask = idx >= 0
        idx_c = torch.where(mask, idx, 0).reshape(-1)
        kg = k[:, :, idx_c, :].reshape(B, H, S, W, Dh)
        vg = v[:, :, idx_c, :].reshape(B, H, S, W, Dh)
        logits = torch.einsum("bhsd,bhswd->bhsw", q, kg) * scale
        logits = torch.where(mask[None, None, :, :], logits, -1e9)
        attn = _softmax(logits, axis=-1)
        o = torch.einsum("bhsw,bhswd->bhsd", attn, vg)
        return (lambda x, *d: x.permute(*d))(o, 0, 2, 1, 3).reshape(B, S, D) @ wo

    def _B_ref(x, w1, w2):
        h = torch.einsum("bsd,df->bsf", x, w1)
        h = _silu(h)
        out = torch.einsum("bsf,fd->bsd", h, w2)
        return out

    x = A_x
    xn = _layernorm(x, axis=-1)
    return x + _A_ref(xn, A_wqkv, A_wo) + _B_ref(xn, B_w1, B_w2)
```

```python
import re

_REG = re.compile(r'^(-|abs\()?([vsa])(\d+)\)?$')
_RNG = re.compile(r'^(-)?([vsa])\[(\d+):(\d+)\]$')

def regs_of(op):
    op = op.strip()
    m = _REG.match(op)
    if m: return [(m.group(2), int(m.group(3)))]
    m = _RNG.match(op)
    if m: return [(m.group(2), i) for i in range(int(m.group(3)), int(m.group(4)) + 1)]
    if op == 'vcc': return [('s', 106), ('s', 107)]
    if op == 'exec': return [('s', 126), ('s', 127)]
    if op == 'm0': return [('s', 124)]
    return []

TRANS = ('v_exp_f32', 'v_log_f32', 'v_rcp_f32', 'v_rsq_f32', 'v_sqrt_f32', 'v_sin_f32', 'v_cos_f32')

class Ins:
    def __init__(self, text):
        self.text = text
        t = text.split(';')[0].strip()
        parts = t.split(None, 1)
        self.op = parts[0]
        rest = parts[1] if len(parts) > 1 else ''
        ops = []; depth = 0; cur = ''
        for ch in rest:
            if ch in '[(': depth += 1
            if ch in '])': depth -= 1
            if ch == ',' and depth == 0: ops.append(cur.strip()); cur = ''
            else: cur += ch
        if cur.strip(): ops.append(cur.strip())
        self.mods = ''
        if ops:
            last = ops[-1].split(None, 1)
            ops[-1] = last[0]
            self.mods = last[1] if len(last) > 1 else ''
        self.ops = ops
        op = self.op
        self.kind = 'other'
        W = []; R = []
        self.mf = None
        if op.startswith('v_mfma'):
            self.kind = 'mfma'
            W = regs_of(ops[0]); self.A = regs_of(ops[1]); self.B = regs_of(ops[2]); self.C = regs_of(ops[3])
            R = self.A + self.B + self.C
            self.passes = 8 if '32x32' in op else 4
        elif op.startswith('v_'):
            self.kind = 'valu'
            if op.startswith('v_cmp'):
                W = regs_of(ops[0]); R = sum((regs_of(o) for o in ops[1:]), [])
                if op.startswith('v_cmpx'): W += regs_of('exec')
            elif op.startswith('v_permlane'):
                W = regs_of(ops[0]) + regs_of(ops[1]); R = list(W)
            elif op.startswith(('v_add_co', 'v_sub_co', 'v_addc_co', 'v_subb_co')):
                W = regs_of(ops[0]) + regs_of(ops[1]); R = sum((regs_of(o) for o in ops[2:]), [])
            else:
                W = regs_of(ops[0]); R = sum((regs_of(o) for o in ops[1:]), [])
                if op.startswith(('v_fmac', 'v_dot2c', 'v_writelane')) or 'dpp' in op: R += regs_of(ops[0])
        elif op.startswith('ds_'):
            self.kind = 'ds'
            if op.startswith(('ds_read', 'ds_bpermute', 'ds_permute', 'ds_swizzle')):
                W = regs_of(ops[0]); R = sum((regs_of(o) for o in ops[1:]), [])
            else:
                R = sum((regs_of(o) for o in ops), [])
        elif op.startswith(('buffer_', 'global_', 'flat_')):
            self.kind = 'vmem'
            islds = (' lds' in ' ' + self.mods) or ('_lds_' in op)
            if islds:
                R = sum((regs_of(o) for o in ops), []) + regs_of('m0'); self.kind = 'vmem'; self.lds = True
            elif '_load' in op:
                W = regs_of(ops[0]); R = sum((regs_of(o) for o in ops[1:]), [])
            elif 'atomic' in op and 'sc0' in self.mods:
                W = regs_of(ops[0]); R = sum((regs_of(o) for o in ops), [])
            else:
                R = sum((regs_of(o) for o in ops), [])
        elif op.startswith('s_'):
            self.kind = 'salu'
            if op.startswith(('s_cmp', 's_cbranch', 's_branch', 's_waitcnt', 's_barrier', 's_nop', 's_endpgm', 's_setprio', 's_sleep', 's_bitcmp')):
                R = sum((regs_of(o) for o in ops), [])
            else:
                W = regs_of(ops[0]) if ops else []; R = sum((regs_of(o) for o in ops[1:]), [])
                if 'saveexec' in op: W += regs_of('exec')
        self.W = set(W); self.R = set(R)
        self.islds = getattr(self, 'lds', False)
        self.states = 1
        if op == 's_nop': self.states = int(ops[0], 0) + 1

def need(prev, cur):
    n = 0
    pv = prev.kind; cv = cur.kind
    vW = {r for r in prev.W if r[0] in 'va'}
    sW = {r for r in prev.W if r[0] == 's'}
    if pv == 'valu':
        isdot = prev.op.startswith('v_dot')
        if cv == 'mfma' and vW & cur.R: n = max(n, 3 if isdot else 2)
        if sW:
            if cv == 'vmem' and sW & cur.R: n = max(n, 5)
            if cv == 'valu' and sW & cur.R:
                n = max(n, 4 if cur.op.startswith(('v_readlane', 'v_writelane')) else 2)
            if cv == 'valu' and cur.op.startswith('v_div_fmas'): n = max(n, 4)
            if ('s', 126) in sW:
                if cv == 'mfma': n = max(n, 4)
                if cv == 'valu' and ('dpp' in cur.op): n = max(n, 5)
                if cv == 'valu' and cur.op.startswith(('v_readlane', 'v_readfirstlane', 'v_writelane', 'v_permlane')): n = max(n, 4)
            if cv == 'salu' and sW & cur.R: n = max(n, 1)
        if cv == 'valu':
            if 'dpp' in cur.op and vW & cur.R: n = max(n, 2)
            if cur.op.startswith('v_permlane') and vW & cur.R: n = max(n, 2)
            if cur.op.startswith(('v_readlane', 'v_readfirstlane')) and vW & cur.R: n = max(n, 1)
            if prev.op.split('_e')[0] in TRANS and vW & cur.R: n = max(n, 1)
            if isdot and (vW & (cur.R | cur.W)):
                if cur.op == prev.op:
                    ab = set(regs_of(cur.ops[1]) + regs_of(cur.ops[2]))
                    if vW & ab: n = max(n, 3)
                else: n = max(n, 3)
            if 'op_sel' in prev.mods and not prev.op.startswith('v_pk') and vW & cur.R: n = max(n, 1)
        if isdot and cv in ('ds', 'vmem') and vW & cur.R: n = max(n, 3)
        if prev.op.split('_e')[0] in TRANS and cv in ('ds', 'vmem', 'mfma') and vW & cur.R: n = max(n, 2)
    if pv == 'mfma':
        p = prev.passes
        D = prev.W
        if cv == 'mfma':
            if D & set(cur.A + cur.B): n = max(n, {4: 8, 8: 12}[p])
            if D & set(cur.C):
                if set(cur.C) == D and cur.passes == p: pass
                else: n = max(n, {4: 6, 8: 10}[p])
            elif D & cur.W: n = max(n, {4: 6, 8: 10}[p])
        elif cv in ('valu', 'ds', 'vmem'):
            if D & (cur.R | cur.W): n = max(n, {4: 8, 8: 12}[p])
        if cv == 'valu' and set(prev.C) & cur.W: n = max(n, {4: 3, 8: 7}[p])
        if cv in ('ds', 'vmem') and set(prev.C) & cur.W: n = max(n, {4: 3, 8: 7}[p])
    if pv == 'salu':
        if ('s', 124) in prev.W and cur.islds: n = max(n, 1)
    if pv == 'vmem' and ('store' in prev.op) and ('x4' in prev.op or 'x3' in prev.op):
        data = set(regs_of(prev.ops[0] if prev.op.startswith('buffer') else prev.ops[1]))
        if data & cur.W: n = max(n, 2)
    if pv == 'ds' and ('write_b128' in prev.op or 'write_b96' in prev.op):
        pass
    return n

class Asm:
    def __init__(self):
        self.lines = []
        self.hist = []
        self.nops = 0
    def raw(self, s):
        self.lines.append(s)
    def label(self, name, pad=True):
        self.lines.append(f"{name}:")
    def c(self, s): self.lines.append(f"    ; {s}")
    def __call__(self, text):
        for t in text.strip().split('\n'):
            t = t.strip()
            if not t or t.startswith(';'): continue
            self.emit(t)
    def emit(self, text):
        ins = Ins(text)
        dist = 0; req = 0
        for p in reversed(self.hist):
            k = need(p, ins)
            if k - dist > req: req = k - dist
            dist += p.states
            if dist >= 20: break
        while req > 0:
            k = min(req, 16)
            nop = Ins(f"s_nop {k-1}")
            self.lines.append(f"    s_nop {k-1}")
            self.hist.append(nop); self.nops += 1
            req -= k
        self.lines.append("    " + text)
        self.hist.append(ins)
        if len(self.hist) > 40: self.hist = self.hist[-40:]
    def reset_hist(self): self.hist = []
    def text(self): return "\n".join(self.lines) + "\n"
```

```python
import sys
from asmlib import Asm

NAME = "parallel_sum__sliding_local_dilated__dense_activation_silu__prompt"
HEADER = open('cdna_kernels/' + NAME + '.s.ref').read().split('; Override')[0]

ACT_BYTES = 128 * 72 * 1024
SLOT = 47104
BOFF = 18432
POFF = BOFF + 24576
NSLOT = 3
STAT = NSLOT * SLOT
STATM = STAT + 144 * 16
STATR = STATM + 144 * 4
CSUM = STATR + 144 * 4
K1_LDS = CSUM + 2 * 224 * 4
LOG2E = 0x3fb8aa3b
STAMP = '--stamp' in sys.argv

def vr(a, n): return f"v[{a}:{a+n-1}]" if n > 1 else f"v{a}"

def stamp(A, idx, kern):
    if not STAMP: return
    A(f"""
    s_memrealtime s[90:91]
    s_waitcnt lgkmcnt(0)
    v_mov_b32 v250, s90
    s_lshl_b32 s92, s2, 8
    s_lshl_b32 s93, s3, 5
    s_add_u32 s92, s92, s93
    s_add_u32 s92, s92, {0x1000000 + kern * 0x100000 + idx * 4}
    v_mov_b32 v251, s92
    buffer_store_dword v250, v251, s[84:87], 0 offen
    """)

def k1(A):
    A.raw(".globl k1_kernel\n.p2align 8\n.type k1_kernel,@function\nk1_kernel:")
    A(f"""
    s_cmp_ge_u32 s2, 256
    s_cbranch_scc1 K1_END
    s_load_dwordx4 s[4:7], s[0:1], 0
    s_load_dwordx2 s[20:21], s[0:1], 32
    s_load_dwordx2 s[22:23], s[0:1], 64
    v_lshrrev_b32 v1, 6, v0
    v_and_b32 v0, 63, v0
    v_readfirstlane_b32 s3, v1
    s_and_b32 s24, s2, 7
    s_lshr_b32 s25, s2, 3
    s_and_b32 s26, s24, 1
    s_lshl_b32 s26, s26, 3
    s_and_b32 s27, s25, 7
    s_add_u32 s26, s26, s27
    s_lshr_b32 s28, s24, 1
    s_lshl_b32 s28, s28, 2
    s_lshr_b32 s29, s25, 3
    s_add_u32 s28, s28, s29
    s_lshl_b32 s29, s29, 1
    s_add_u32 s30, s27, s29
    s_and_b32 s30, s30, 7
    """)
    A(f"""
    v_lshrrev_b32 v2, 3, v0
    v_and_b32 v3, 7, v0
    v_lshrrev_b32 v4, 1, v2
    v_xor_b32 v5, v3, v4
    v_lshlrev_b32 v5, 4, v5
    """)
    A(f"""
    s_lshr_b32 s31, s3, 2
    s_and_b32 s32, s3, 3
    s_lshl_b32 s33, s26, 7
    s_lshl_b32 s34, s32, 5
    s_add_u32 s34, s34, s33
    s_add_u32 s34, s34, s31
    s_lshl_b32 s34, s34, 10
    v_lshlrev_b32 v6, 11, v2
    v_add3_u32 v10, v6, v5, s34
    v_xor_b32 v11, 64, v10
    v_add_u32 v11, 0x4000, v11
    """)
    A(f"""
    v_bfe_u32 v7, v0, 1, 2
    v_and_b32 v8, 1, v4
    s_and_b32 s35, s3, 1
    s_lshl_b32 s36, s35, 1
    v_or_b32 v8, s36, v8
    v_xor_b32 v7, v7, v8
    v_lshlrev_b32 v7, 5, v7
    v_and_b32 v8, 1, v0
    v_lshl_or_b32 v7, v8, 4, v7
    s_lshl_b32 s36, s3, 3
    v_add_u32 v9, s36, v2
    """)
    A(f"""
    v_and_b32 v20, 15, v0
    v_lshrrev_b32 v21, 4, v0
    v_bfe_u32 v22, v0, 2, 2
    v_and_b32 v23, 3, v0
    v_lshrrev_b32 v24, 1, v20
    v_xor_b32 v24, v21, v24
    v_lshlrev_b32 v24, 4, v24
    v_lshl_or_b32 v24, v20, 7, v24
    v_lshrrev_b32 v25, 1, v22
    v_and_b32 v26, 1, v21
    v_lshl_or_b32 v25, v26, 1, v25
    v_mul_u32_u24 v27, 3072, v21
    v_lshl_add_u32 v27, v22, 7, v27
    v_lshl_add_u32 v27, v23, 3, v27
    v_add_u32 v27, {BOFF}, v27
    v_lshlrev_b32 v12, 4, v0
    """)
    A("s_waitcnt lgkmcnt(0)")
    A(f"""
    s_mov_b32 s8, s4
    s_mov_b32 s9, s5
    s_mov_b32 s10, 0x200000
    s_mov_b32 s11, 0x20000
    s_mov_b32 s15, 0x20000
    s_mov_b32 s16, s22
    s_mov_b32 s17, s23
    s_mov_b32 s18, {ACT_BYTES}
    s_mov_b32 s19, 0x20000
    s_mov_b32 s40, 0x3f803f80
    """)
    if STAMP:
        A("s_mov_b32 s84, s22\ns_mov_b32 s85, s23\ns_mov_b32 s86, 0x2000000\ns_mov_b32 s87, 0x20000")
    stamp(A, 0, 0)
    A(f"""
    s_cmp_ge_u32 s28, 8
    s_cbranch_scc1 K1_FFN
    """)
    k1_path(A, 'qkv')
    A.label("K1_FFN"); A.reset_hist()
    A(f"""
    s_mov_b32 s12, s20
    s_mov_b32 s13, s21
    s_mov_b32 s14, {512*1792*2}
    s_sub_u32 s37, s28, 8
    s_mul_i32 s38, s37, 448
    s_and_b32 s39, s37, 1
    s_lshl_b32 s41, s39, 6
    s_add_u32 s41, s41, s38
    s_cmp_eq_u32 s39, 0
    s_cselect_b32 s42, 384, 0
    s_add_u32 s42, s42, s38
    v_mul_u32_u24 v13, 3584, v9
    v_add3_u32 v13, v13, v7, s41
    s_cmp_ge_u32 s3, 4
    s_cbranch_scc1 K1_FFN3
    """)
    k1_path(A, 'ffn4')
    A.label("K1_FFN3"); A.reset_hist()
    k1_path(A, 'ffn3')
    A.label("K1_END")
    A("s_endpgm")

def k1_path(A, kind):
    P = kind.upper()
    qkv = kind == 'qkv'
    stride = 3072 if qkv else 3584
    nA = 5 if qkv else 4
    nB = {'qkv': 3, 'ffn4': 4, 'ffn3': 3}[kind]
    aA = [28, 29]
    aH = [30, 31]
    aS = 32
    aSH = 33
    aB = [[34 + 2*j, 35 + 2*j] for j in range(4)]
    RS = [42, 43, 44, 45, 46, 47]
    CS = [48, 49, 50, 51]
    ST = 52
    F = [64, 64 + 32]
    ACC = 128
    def fA(s, i): return F[s] + 4 * i
    def fB(s, j): return F[s] + 4 * (nA + j)
    hs = 's31' if qkv else 's35'
    if qkv:
        A(f"""
        s_mov_b32 s12, s6
        s_mov_b32 s13, s7
        s_mov_b32 s14, {512*1536*2}
        s_lshl_b32 s41, s28, 7
        v_mul_u32_u24 v13, 3072, v9
        v_add3_u32 v13, v13, v7, s41
        """)
        A(f"""
        s_sub_u32 s36, s33, 16
        s_add_u32 s36, s36, s35
        s_lshl_b32 s36, s36, 10
        s_lshl_b32 s37, s35, 6
        v_xor_b32 v14, s37, v5
        v_add3_u32 v14, v14, v6, s36
        """)
    elif kind == 'ffn3':
        A(f"""
        v_lshrrev_b32 v15, 2, v0
        s_lshl_b32 s36, s32, 4
        v_add_u32 v16, s36, v15
        v_mul_u32_u24 v16, 3584, v16
        v_bfe_u32 v17, v0, 1, 1
        v_lshrrev_b32 v18, 5, v0
        v_xor_b32 v17, v17, v18
        v_lshlrev_b32 v17, 5, v17
        v_and_b32 v18, 1, v0
        v_lshl_or_b32 v17, v18, 4, v17
        v_add3_u32 v14, v16, v17, s42
        """)
    A(f"""
    s_lshl_b32 s44, s3, 11
    s_mul_i32 s45, s3, 3072
    s_add_u32 s45, s45, {BOFF}
    """)
    if qkv:
        A(f"s_lshl_b32 s46, s35, 10\ns_add_u32 s46, s46, 16384")
        A("s_lshr_b32 s47, s3, 1\ns_cmp_eq_u32 s47, 2\ns_cselect_b32 s47, 1, 0")
    elif kind == 'ffn3':
        A(f"s_lshl_b32 s46, s32, 10\ns_add_u32 s46, s46, {POFF}")
    A("s_mov_b32 s48, 0")

    cnt = [0]
    def dma_list():
        G = []
        G.append(f"""
        s_lshl_b32 s50, s30, 7
        s_mul_i32 s51, s30, {64*stride}
        s_add_u32 m0, s44, s48
        s_add_u32 s52, s45, s48
        buffer_load_dwordx4 v10, s[8:11], s50 offen lds""")
        G.append(f"""
        s_mov_b32 m0, s52
        s_add_u32 s53, s44, s48
        buffer_load_dwordx4 v13, s[12:15], s51 offen lds""")
        if qkv:
            G.append(f"buffer_load_dwordx4 v13, s[12:15], s51 offen offset:1024 lds")
            G.append(f"buffer_load_dwordx4 v13, s[12:15], s51 offen offset:2048 lds")
        else:
            G.append(f"""
            s_add_u32 m0, s52, {1024-128}
            buffer_load_dwordx4 v13, s[12:15], s51 offen offset:128 lds""")
            G.append(f"""
            s_add_u32 m0, s52, {2048-256}
            buffer_load_dwordx4 v13, s[12:15], s51 offen offset:256 lds""")
        G.append(f"""
        s_add_u32 m0, s53, 1024
        buffer_load_dwordx4 v11, s[8:11], s50 offen lds""")
        if qkv:
            cnt[0] += 1
            lb = f"{P}_XD{cnt[0]}"
            G.append(('X', lb))
        elif kind == 'ffn3':
            G.append(f"""
            s_add_u32 m0, s46, s48
            buffer_load_dwordx4 v14, s[12:15], s51 offen lds""")
        G.append(f"""
        s_add_u32 s30, s30, 1
        s_and_b32 s30, s30, 7
        s_add_u32 s48, s48, {SLOT}
        s_cmp_eq_u32 s48, {NSLOT*SLOT}
        s_cselect_b32 s48, 0, s48""")
        return G
    def emit_g(g):
        if isinstance(g, tuple):
            A(f"""
            s_cmp_eq_u32 s47, 0
            s_cbranch_scc1 {g[1]}
            s_add_u32 m0, s46, s48
            buffer_load_dwordx4 v14, s[8:11], s50 offen lds""")
            A.label(g[1])
        else:
            A(g)
    ndma = 6 if kind == 'ffn3' else 5
    for st in range(3):
        for g in dma_list(): emit_g(g)

    if qkv:
        A(f"s_lshl_b32 s36, s31, 13")
    else:
        A(f"s_lshl_b32 s36, s35, 13")
    A(f"""
    s_lshl_b32 s37, {hs}, 6
    v_xor_b32 v{aA[0]}, s37, v24
    v_add_u32 v{aA[0]}, s36, v{aA[0]}
    v_xor_b32 v{aA[1]}, 64, v{aA[0]}
    s_lshl_b32 s36, s3, 11
    v_add_u32 v{aS}, s36, v12
    s_mul_i32 s54, {hs}, 12288
    s_sub_u32 s55, 12288, s54
    """) if not False else None
    if kind != 'qkv':
        A("s_sub_u32 s37, s28, 8")
    addr_regs = [aA[0], aA[1], aS]
    if qkv:
        A(f"""
        v_and_b32 v15, 7, v20
        v_lshrrev_b32 v16, 1, v15
        v_xor_b32 v16, v21, v16
        v_lshlrev_b32 v16, 4, v16
        v_lshl_or_b32 v16, v15, 7, v16
        s_lshl_b32 s36, s31, 10
        s_add_u32 s36, s36, 16384
        v_add_u32 v{aH[0]}, s36, v16
        v_xor_b32 v{aH[1]}, 64, v{aH[0]}
        s_lshl_b32 s36, s35, 10
        s_add_u32 s36, s36, 16384
        v_add_u32 v{aSH}, s36, v12
        v_xor_b32 v15, s32, v25
        v_lshl_add_u32 v15, v15, 5, v27
        v_add_u32 v{aB[0][0]}, s54, v15
        v_add_u32 v{aB[0][1]}, s55, v15
        """)
        addr_regs += [aH[0], aH[1], aSH, aB[0][0], aB[0][1]]
        bsrc = [(0, 0), (0, 1024), (0, 2048)]
        tstep = [512] * 3
    elif kind == 'ffn4':
        A("s_lshr_b32 s36, s3, 1\ns_lshl_b32 s36, s36, 10\ns_add_u32 s54, s54, s36\ns_add_u32 s55, s55, s36")
        for c in range(4):
            A(f"""
            v_xor_b32 v15, {c}, v25
            v_lshl_add_u32 v15, v15, 5, v27
            v_add_u32 v{aB[c][0]}, s54, v15
            v_add_u32 v{aB[c][1]}, s55, v15
            """)
            addr_regs += aB[c]
        bsrc = [(c, 0) for c in range(4)]
        tstep = [512] * 4
    else:
        A("s_lshr_b32 s36, s3, 1\ns_and_b32 s36, s36, 1\ns_lshl_b32 s56, s36, 1")
        for c in range(2):
            A(f"""
            v_xor_b32 v15, s56, v25
            v_xor_b32 v15, {c}, v15
            v_lshl_add_u32 v15, v15, 5, v27
            v_add_u32 v{aB[c][0]}, s54, v15
            v_add_u32 v{aB[c][1]}, s55, v15
            """)
            addr_regs += aB[c]
        A(f"""
        v_lshlrev_b32 v15, 9, v21
        v_lshl_add_u32 v15, v22, 6, v15
        v_lshl_add_u32 v15, v23, 3, v15
        v_xor_b32 v16, s36, v26
        v_lshl_add_u32 v15, v16, 5, v15
        s_lshl_b32 s57, s35, 11
        s_add_u32 s58, s57, {POFF}
        s_sub_u32 s57, {POFF + 2048}, s57
        v_add_u32 v{aB[2][0]}, s58, v15
        v_add_u32 v{aB[2][1]}, s57, v15
        """)
        addr_regs += aB[2]
        bsrc = [(0, 2048), (1, 2048), (2, 0)]
        tstep = [512, 512, 256]
    nacc = {'qkv': 14, 'ffn4': 16, 'ffn3': 12}[kind]
    for r in range(ACC, ACC + 4 * nacc): A(f"v_mov_b32 v{r}, 0")
    for r in RS + CS: A(f"v_mov_b32 v{r}, 0")

    def reads(s, step):
        R = []
        for j in range(nB):
            ai, imm = bsrc[j]
            R.append(f"ds_read_b64_tr_b16 {vr(fB(s,j),2)}, v{aB[ai][step]} offset:{imm}")
            R.append(f"ds_read_b64_tr_b16 {vr(fB(s,j)+2,2)}, v{aB[ai][step]} offset:{imm+tstep[j]}")
        RA = []
        for i in range(4):
            RA.append(f"ds_read_b128 {vr(fA(s,i),4)}, v{aA[step]} offset:{2048*i}")
        if qkv: RA.append(f"ds_read_b128 {vr(fA(s,4),4)}, v{aH[step]}")
        return [RA[0]] + R[0:2] + RA[1:] + R[2:]
    def mfmas(s):
        M = []
        if qkv:
            for i in range(4): M.append(f"v_mfma_f32_16x16x32_bf16 {vr(ACC+4*i,4)}, {vr(fB(s,0),4)}, {vr(fA(s,i),4)}, {vr(ACC+4*i,4)}")
            for i in range(5):
                a = 4 if i == 0 else i - 1
                d = ACC + 4 * (4 + i)
                M.append(f"v_mfma_f32_16x16x32_bf16 {vr(d,4)}, {vr(fB(s,1),4)}, {vr(fA(s,a),4)}, {vr(d,4)}")
            for i in range(5):
                a = 4 if i == 0 else i - 1
                d = ACC + 4 * (9 + i)
                M.append(f"v_mfma_f32_16x16x32_bf16 {vr(d,4)}, {vr(fA(s,a),4)}, {vr(fB(s,2),4)}, {vr(d,4)}")
        else:
            for j in range(nB):
                for i in range(4):
                    d = ACC + 4 * (i * nB + j)
                    M.append(f"v_mfma_f32_16x16x32_bf16 {vr(d,4)}, {vr(fB(s,j),4)}, {vr(fA(s,i),4)}, {vr(d,4)}")
        return M
    def interleave(M, others):
        n = len(M); k = len(others); done = 0
        for i, m in enumerate(M):
            A(m)
            tgt = (k * (i + 1) + n - 1) // n
            while done < tgt:
                emit_g(others[done]); done += 1

    nst = 3 if qkv else 2
    def wait_stage(n_keep_stages):
        if n_keep_stages == 0:
            A("s_waitcnt vmcnt(0)")
        else:
            A(f"s_waitcnt vmcnt({ndma*n_keep_stages})")
    wait_stage(2)
    A("s_barrier")
    stamp(A, 1, 0)
    for r in reads(0, 0): A(r)
    A(f"s_mov_b32 s60, 0\ns_mov_b32 s61, 0")
    A.label(f"{P}_LOOP")
    A("s_waitcnt lgkmcnt(0)")
    oth = reads(1, 1)
    oth += [f"ds_read_b128 {vr(ST,4)}, v{aS}", f"ds_read_b128 {vr(ST+4,4)}, v{aS} offset:1024"]
    if qkv: oth += [f"ds_read_b128 {vr(ST+8,4)}, v{aSH}"]
    cs = []
    for q in range(4):
        for j in range(nB):
            cs.append(f"v_dot2c_f32_bf16 v{CS[j]}, s40, v{fB(0,j)+q}")
    interleave(mfmas(0), oth + cs)
    A(f"""
    s_add_u32 s61, s61, {SLOT}
    s_cmp_eq_u32 s61, {NSLOT*SLOT}
    s_cselect_b32 s61, 0, s61
    s_cselect_b32 s62, {(-2*SLOT) & 0xffffffff}, {SLOT}
    """.replace(f"s_cselect_b32 s62, {(-2*SLOT) & 0xffffffff}, {SLOT}", f"s_mov_b32 s62, {SLOT}\ns_cselect_b32 s62, {(-2*SLOT) & 0xffffffff}, s62"))
    A(f"""
    s_cmp_ge_u32 s60, 6
    s_cbranch_scc0 {P}_W1
    s_waitcnt vmcnt(0)
    """)
    A.label(f"{P}_W1")
    A(f"s_waitcnt vmcnt({ndma}) lgkmcnt(0)")
    A("s_barrier")
    upd = [f"v_add_u32 v{r}, s62, v{r}" for r in addr_regs]
    rs = []
    for u in range(nst):
        for q in range(4):
            rs.append(f"v_dot2c_f32_bf16 v{RS[2*u]}, s40, v{ST+4*u+q}")
            rs.append(f"v_dot2c_f32_bf16 v{RS[2*u+1]}, v{ST+4*u+q}, v{ST+4*u+q}")
    M = mfmas(1)
    h = len(M) // 2
    for u in upd: A(u)
    interleave(M[:h], reads(0, 0) + rs[:8])
    A(f"s_cmp_ge_u32 s60, 5\ns_cbranch_scc1 {P}_NODMA")
    interleave(M[h:], dma_list())
    A(f"s_branch {P}_JOIN")
    A.label(f"{P}_NODMA")
    for m in M[h:]: A(m)
    A.label(f"{P}_JOIN")
    for r in rs[8:]: A(r)
    A(f"""
    s_add_u32 s60, s60, 1
    s_cmp_lt_u32 s60, 8
    s_cbranch_scc1 {P}_LOOP
    """)
    A("s_waitcnt lgkmcnt(0)")
    stamp(A, 2, 0)
    T = 64
    A("s_nop 2")
    for u in range(nst):
        for x in (RS[2*u], RS[2*u+1]):
            A(f"v_add_f32_dpp v{x}, v{x}, v{x} quad_perm:[1,0,3,2] row_mask:0xf bank_mask:0xf")
    for u in range(nst):
        for x in (RS[2*u], RS[2*u+1]):
            A(f"v_add_f32_dpp v{x}, v{x}, v{x} quad_perm:[2,3,0,1] row_mask:0xf bank_mask:0xf")
    for u in range(nst):
        for x in (RS[2*u], RS[2*u+1]):
            A(f"v_add_f32_dpp v{x}, v{x}, v{x} row_half_mirror row_mask:0xf bank_mask:0xf")
    for j in range(nB):
        A(f"""
        v_mov_b32 v{T+j}, v{CS[j]}
        v_permlane32_swap_b32 v{T+j}, v{CS[j]}
        v_add_f32 v{CS[j]}, v{CS[j]}, v{T+j}
        v_mov_b32 v{T+j}, v{CS[j]}
        v_permlane16_swap_b32 v{T+j}, v{CS[j]}
        v_add_f32 v{CS[j]}, v{CS[j]}, v{T+j}
        """)
    A(f"s_mov_b32 s64, 0x3b000000\ns_mov_b32 s65, 0x3727c5ac\ns_mov_b32 s66, {LOG2E | 0x80000000}")
    for u in range(nst):
        S, Q = RS[2*u], RS[2*u+1]
        o = T + 8 + 4 * u
        A(f"""
        v_mul_f32 v{S}, s64, v{S}
        v_mul_f32 v{Q}, s64, v{Q}
        v_fma_f32 v{Q}, -v{S}, v{S}, v{Q}
        v_max_f32 v{Q}, 0, v{Q}
        v_cvt_pk_bf16_f32 v{S}, v{S}, v{Q}
        v_and_b32 v{Q}, 0xffff0000, v{S}
        v_lshlrev_b32 v{S}, 16, v{S}
        v_add_f32 v{Q}, s65, v{Q}
        v_cvt_pk_bf16_f32 v{Q}, v{Q}, v{Q}
        v_and_b32 v{Q}, 0xffff0000, v{Q}
        v_sqrt_f32 v{Q}, v{Q}
        v_cvt_pk_bf16_f32 v{Q}, v{Q}, v{Q}
        v_and_b32 v{o+3}, 0xffff0000, v{Q}
        v_rcp_f32 v{o+1}, v{o+3}
        v_sub_f32 v{o}, 0, v{S}
        v_mul_f32 v{o+2}, s66, v{o+1}
        """)
    A(f"""
    s_lshl_b32 s36, s3, 4
    v_add_u32 v15, s36, v2
    v_lshlrev_b32 v16, 4, v15
    v_lshlrev_b32 v17, 2, v15
    v_add_u32 v16, {STAT}, v16
    v_add_u32 v17, {STATM}, v17
    ds_write_b128 v16, {vr(T+8,4)}
    ds_write_b128 v16, {vr(T+12,4)} offset:128
    """)
    if qkv:
        A(f"""
        ds_write_b32 v17, v{T+8}
        ds_write_b32 v17, v{T+9} offset:{144*4}
        ds_write_b32 v17, v{T+12} offset:32
        ds_write_b32 v17, v{T+13} offset:{144*4+32}
        s_lshl_b32 s36, s35, 3
        s_add_u32 s36, s36, 128
        v_add_u32 v15, s36, v2
        v_lshlrev_b32 v16, 4, v15
        v_lshlrev_b32 v17, 2, v15
        v_add_u32 v16, {STAT}, v16
        v_add_u32 v17, {STATM}, v17
        ds_write_b128 v16, {vr(T+16,4)}
        ds_write_b32 v17, v{T+16}
        ds_write_b32 v17, v{T+17} offset:{144*4}
        """)
    if qkv:
        A("s_lshl_b32 s67, s32, 6"); cboff = [0, 256, 512]
    elif kind == 'ffn4':
        A("s_lshr_b32 s67, s3, 1\ns_lshl_b32 s67, s67, 8"); cboff = [0, 64, 128, 192]
    else:
        A("s_lshl_b32 s67, s56, 6"); cboff = [512, 576, None]
    A(f"""
    s_mul_i32 s68, {hs}, 896
    s_add_u32 s68, s68, s67
    s_add_u32 s68, s68, {CSUM}
    v_lshl_add_u32 v15, v20, 2, s68
    """)
    for j in range(nB):
        if cboff[j] is not None:
            A(f"ds_write_b32 v15, v{CS[j]} offset:{cboff[j]}")
        else:
            A(f"s_lshl_b32 s69, s56, 5\nv_subrev_u32 v16, s69, v15\nds_write_b32 v16, v{CS[j]} offset:768")
    A("s_waitcnt lgkmcnt(0)\ns_barrier")
    SR = 64
    A(f"""
    s_lshl_b32 s36, {hs}, 10
    s_add_u32 s36, s36, {STAT}
    v_lshl_add_u32 v15, v20, 4, s36
    """)
    for i in range(4): A(f"ds_read_b128 {vr(SR+4*i,4)}, v15 offset:{256*i}")
    CR = 84
    A(f"""
    s_add_u32 s68, s67, {CSUM}
    v_lshl_add_u32 v16, v21, 4, s68
    """)
    A(f"""
    s_lshl_b32 s70, s26, 1
    s_add_u32 s70, s70, {hs}
    s_mul_i32 s70, s70, {4*72*1024}
    """)
    if not qkv:
        for j in range(nB):
            if cboff[j] is not None:
                A(f"ds_read_b128 {vr(CR+4*j,4)}, v16 offset:{cboff[j]}")
                A(f"ds_read_b128 {vr(CR+16+4*j,4)}, v16 offset:{cboff[j]+896}")
            else:
                A(f"v_subrev_u32 v17, s69, v16")
                A(f"ds_read_b128 {vr(CR+4*j,4)}, v17 offset:768")
                A(f"ds_read_b128 {vr(CR+16+4*j,4)}, v17 offset:{768+896}")
        A(f"""
        s_mul_i32 s71, s37, 7
        s_add_u32 s71, s71, 16
        s_cmp_eq_u32 s39, 0
        s_cselect_b32 s72, 6, 0
        s_add_u32 s72, s72, s71
        s_add_u32 s71, s71, s39
        """)
        if kind == 'ffn4':
            A("s_lshr_b32 s73, s3, 1\ns_lshl_b32 s73, s73, 1\ns_add_u32 s71, s71, s73")
        else:
            A("s_lshr_b32 s73, s56, 1\ns_add_u32 s71, s71, s73\ns_add_u32 s71, s71, 4")
            A("s_lshl_b32 s72, s72, 10\ns_add_u32 s72, s72, s70\ns_lshl_b32 s73, s73, 3\ns_add_u32 s72, s72, s73")
        A("s_lshl_b32 s71, s71, 10\ns_add_u32 s71, s71, s70")
        A("s_waitcnt lgkmcnt(0)")
        for j in range(nB):
            for q in (0, 2):
                A(f"v_pk_add_f32 {vr(CR+4*j+q,2)}, {vr(CR+4*j+q,2)}, {vr(CR+16+4*j+q,2)}")
        TM = 100
        OUT = 116
        for i in range(4):
            st = SR + 4 * i
            for j in range(nB):
                a = ACC + 4 * (i * nB + j)
                t = TM + 4 * (j % 4)
                for q in (0, 2):
                    A(f"v_pk_fma_f32 {vr(a+q,2)}, {vr(CR+4*j+q,2)}, {vr(st,2)}, {vr(a+q,2)} op_sel_hi:[1,0,1]")
                for q in (0, 2):
                    A(f"v_pk_mul_f32 {vr(t+q,2)}, {vr(a+q,2)}, {vr(st+2,2)} op_sel_hi:[1,0]")
                for q in range(4): A(f"v_exp_f32 v{t+q}, v{t+q}")
            for j in range(nB):
                t = TM + 4 * (j % 4)
                for q in (0, 2):
                    A(f"v_pk_fma_f32 {vr(t+q,2)}, {vr(t+q,2)}, {vr(st+2,2)}, {vr(st+2,2)} op_sel:[0,1,1] op_sel_hi:[1,1,1]")
                for q in range(4): A(f"v_rcp_f32 v{t+q}, v{t+q}")
            o = OUT + (i % 2) * 8 if False else None
            for j in range(nB):
                a = ACC + 4 * (i * nB + j)
                t = TM + 4 * (j % 4)
                for q in (0, 2):
                    A(f"v_pk_mul_f32 {vr(t+q,2)}, {vr(a+q,2)}, {vr(t+q,2)}")
            base = ACC + 4 * (i * nB)
            for j in range(nB):
                t = TM + 4 * (j % 4)
                A(f"v_cvt_pk_bf16_f32 v{base+2*j}, v{t}, v{t+1}")
                A(f"v_cvt_pk_bf16_f32 v{base+2*j+1}, v{t+2}, v{t+3}")
            A(f"buffer_store_dwordx4 {vr(base,4)}, v12, s[16:19], s71 offen")
            if kind == 'ffn4':
                A(f"buffer_store_dwordx4 {vr(base+4,4)}, v12, s[16:19], s71 offen offset:1024")
            else:
                A(f"buffer_store_dwordx2 {vr(base+4,2)}, v12, s[16:19], s72 offen")
                A(f"s_add_u32 s72, s72, {72*1024}")
            A(f"s_add_u32 s71, s71, {72*1024}")
    else:
        qkv_epilogue(A, ACC, SR, CR)
    stamp(A, 3, 0)
    if STAMP:
        A("s_waitcnt vmcnt(0)")
        stamp(A, 4, 0)
    A("s_endpgm")

def qkv_epilogue(A, ACC, SR, CR):
    A(f"""
    v_and_b32 v17, 7, v20
    s_lshl_b32 s36, s31, 7
    s_add_u32 s36, s36, {STAT + 128*16}
    v_lshl_add_u32 v17, v17, 4, s36
    ds_read_b128 {vr(SR+16,4)}, v17
    ds_read_b128 {vr(CR,4)}, v16
    ds_read_b128 {vr(CR+16,4)}, v16 offset:896
    ds_read_b128 {vr(CR+4,4)}, v16 offset:256
    ds_read_b128 {vr(CR+20,4)}, v16 offset:{256+896}
    v_lshl_add_u32 v17, v20, 2, s68
    ds_read_b32 v{CR+8}, v17 offset:512
    ds_read_b32 v{CR+24}, v17 offset:{512+896}
    """)
    VS = 192
    A(f"""
    s_lshl_b32 s36, s31, 8
    s_add_u32 s36, s36, {STATM}
    v_lshl_add_u32 v17, v21, 4, s36
    """)
    for i in range(4):
        A(f"ds_read_b128 {vr(VS+8*(i+1),4)}, v17 offset:{64*i}")
        A(f"ds_read_b128 {vr(VS+8*(i+1)+4,4)}, v17 offset:{64*i+144*4}")
    A(f"""
    s_lshl_b32 s36, s31, 5
    s_add_u32 s36, s36, {STATM + 128*4}
    v_lshl_add_u32 v17, v26, 4, s36
    ds_read_b128 {vr(VS,4)}, v17
    ds_read_b128 {vr(VS+4,4)}, v17 offset:{144*4}
    """)
    BC = 28; BP = 32; BP0 = 36; MC = 40; ONES = 44
    A(f"""
    v_lshlrev_b32 v18, 2, v21
    v_sub_u32 v18, v20, v18
    s_mov_b32 s74, 0xf149f2ca
    v_mov_b32 v19, s74
    """)
    for r in range(4):
        A(f"""
        v_subrev_u32 v17, {r}, v18
        v_cmp_gt_u32 vcc, 8, v17
        v_cndmask_b32 v{BC+r}, v19, 0, vcc
        v_cmp_gt_i32 vcc, -8, v17
        v_cndmask_b32 v{BP+r}, v19, 0, vcc
        v_cmp_le_i32 vcc, 0, v17
        v_cndmask_b32 v{ONES+r}, 0, -1, vcc
        """.replace(f"v_cndmask_b32 v{BC+r}, v19, 0, vcc", f"v_cndmask_b32_e64 v{BC+r}, v19, 0, vcc")
           .replace(f"v_cndmask_b32 v{BP+r}, v19, 0, vcc", f"v_cndmask_b32_e64 v{BP+r}, v19, 0, vcc")
           .replace(f"v_cndmask_b32 v{ONES+r}, 0, -1, vcc", f"v_cndmask_b32_e64 v{ONES+r}, 0, -1, vcc"))
    A(f"""
    s_mov_b32 s75, 0xffff
    v_bfi_b32 v{MC}, s75, v{ONES}, v{ONES+1}
    v_bfi_b32 v{MC+1}, s75, v{ONES+2}, v{ONES+3}
    s_cmp_eq_u32 s26, 0
    s_cselect_b32 s76, s74, 0
    """)
    for r in range(4):
        A(f"v_min_f32 v{BP0+r}, s76, v{BP+r}")
        A(f"v_mov_b32 v{ONES+r}, s40")
    A("s_waitcnt lgkmcnt(0)")
    for q in (0, 2, 4, 6): A(f"v_pk_add_f32 {vr(CR+q,2)}, {vr(CR+q,2)}, {vr(CR+16+q,2)}")
    A(f"v_add_f32 v{CR+8}, v{CR+8}, v{CR+24}")
    QP = 232; KP = 240; VP = 52
    def corr_sw(a, st, cs, dst):
        for q in (0, 2):
            A(f"v_pk_fma_f32 {vr(a+q,2)}, {vr(cs+q,2)}, {vr(st,2)}, {vr(a+q,2)} op_sel_hi:[1,0,1]")
        for q in (0, 2):
            A(f"v_pk_mul_f32 {vr(a+q,2)}, {vr(a+q,2)}, {vr(st,2)} op_sel:[0,1] op_sel_hi:[1,1]")
        A(f"v_cvt_pk_bf16_f32 v{dst}, v{a}, v{a+1}")
        A(f"v_cvt_pk_bf16_f32 v{dst+1}, v{a+2}, v{a+3}")
    for i in range(4): corr_sw(ACC + 4*i, SR + 4*i, CR, QP + 2*i)
    for i in range(5): corr_sw(ACC + 4*(4+i), SR + (16 if i == 0 else 4*(i-1)), CR + 4, KP + 2*i)
    for b in range(4):
        A(f"v_mfma_f32_16x16x16_bf16 {vr(ACC+8*b,4)}, {vr(KP+2*(b+1),2)}, {vr(QP+2*b,2)}, {vr(BC,4)}")
        A(f"v_mfma_f32_16x16x16_bf16 {vr(ACC+8*b+4,4)}, {vr(KP+2*b,2)}, {vr(QP+2*b,2)}, {vr(BP0 if b == 0 else BP,4)}")
    for i in range(5):
        a = ACC + 4*(9+i); vs = VS + 8*i
        for q in (0, 2):
            A(f"v_pk_fma_f32 {vr(a+q,2)}, {vr(vs+q,2)}, {vr(CR+8,2)}, {vr(a+q,2)} op_sel_hi:[1,0,1]")
        for q in (0, 2):
            A(f"v_pk_mul_f32 {vr(a+q,2)}, {vr(a+q,2)}, {vr(vs+4+q,2)}")
        A(f"v_cvt_pk_bf16_f32 v{VP+2*i}, v{a}, v{a+1}")
        A(f"v_cvt_pk_bf16_f32 v{VP+2*i+1}, v{a+2}, v{a+3}")
    MX = 64; TT = 68
    A(f"s_mov_b32 s77, 0x3eb8aa3b")
    for b in range(4):
        c = ACC + 8*b
        for r in range(4): A(f"v_max_f32 v{c+r}, v{c+r}, v{c+4+r}")
    for b in range(4):
        c = ACC + 8*b
        A(f"v_max3_f32 v{MX+b}, v{c}, v{c+1}, v{c+2}")
    for b in range(4):
        c = ACC + 8*b
        A(f"v_max_f32 v{MX+b}, v{MX+b}, v{c+3}")
    for sw in ("v_permlane32_swap_b32", "v_permlane16_swap_b32"):
        for b in range(4): A(f"v_mov_b32 v{TT+b}, v{MX+b}")
        for b in range(4): A(f"{sw} v{TT+b}, v{MX+b}")
        for b in range(4): A(f"v_max_f32 v{MX+b}, v{MX+b}, v{TT+b}")
    for b in range(4): A(f"v_mul_f32 v{MX+b}, s77, v{MX+b}")
    for b in range(4):
        c = ACC + 8*b
        for r in range(4): A(f"v_fma_f32 v{c+r}, v{c+r}, s77, -v{MX+b}")
        for r in range(4): A(f"v_exp_f32 v{c+r}, v{c+r}")
    for b in range(4):
        c = ACC + 8*b
        A(f"v_cvt_pk_bf16_f32 v{c}, v{c}, v{c+1}")
        A(f"v_cvt_pk_bf16_f32 v{c+1}, v{c+2}, v{c+3}")
        A(f"v_bfi_b32 v{c+4}, v{MC}, 0, v{c}")
        A(f"v_bfi_b32 v{c+5}, v{MC+1}, 0, v{c+1}")
        A(f"v_and_b32 v{c+6}, v{MC}, v{c}")
        A(f"v_and_b32 v{c+7}, v{MC+1}, v{c+1}")
    OD = 72
    for b in range(4):
        c = ACC + 8*b
        A(f"v_mfma_f32_16x16x32_bf16 {vr(OD+8*b,4)}, {vr(VP+2*b,4)}, {vr(c+4,4)}, 0")
        A(f"v_mfma_f32_16x16x32_bf16 {vr(OD+8*b+4,4)}, {vr(ONES,4)}, {vr(c+4,4)}, 0")
    A(f"""
    s_lshl_b32 s71, s28, 1
    s_lshr_b32 s72, s32, 1
    s_add_u32 s71, s71, s72
    s_lshl_b32 s71, s71, 10
    s_add_u32 s71, s71, s70
    s_lshl_b32 s72, s35, 3
    s_add_u32 s71, s71, s72
    """)
    for b in range(4): A(f"v_rcp_f32 v{OD+8*b+4}, v{OD+8*b+4}")
    for b in range(4):
        o = OD + 8*b
        for q in (0, 2):
            A(f"v_pk_mul_f32 {vr(o+q,2)}, {vr(o+q,2)}, {vr(o+4,2)} op_sel_hi:[1,0]")
        A(f"v_cvt_pk_bf16_f32 v{o}, v{o}, v{o+1}")
        A(f"v_cvt_pk_bf16_f32 v{o+1}, v{o+2}, v{o+3}")
        A(f"buffer_store_dwordx2 {vr(o,2)}, v12, s[16:19], s71 offen")
        A(f"s_add_u32 s71, s71, {72*1024}")

NW2 = 4
D2 = 6
def k2(A):
    nsb = 72 // NW2; nwo = 16 // NW2; nw2 = 56 // NW2
    A.reset_hist()
    A.raw(".globl k2_kernel\n.p2align 8\n.type k2_kernel,@function\nk2_kernel:")
    A(f"""
    s_cmp_ge_u32 s2, 256
    s_cbranch_scc1 K2_END
    s_load_dwordx2 s[4:5], s[0:1], 0
    s_load_dwordx2 s[6:7], s[0:1], 16
    s_load_dwordx4 s[20:23], s[0:1], 40
    s_load_dwordx2 s[24:25], s[0:1], 64
    v_lshrrev_b32 v1, 6, v0
    v_and_b32 v0, 63, v0
    v_readfirstlane_b32 s3, v1
    s_and_b32 s26, s2, 7
    s_lshr_b32 s27, s2, 3
    s_lshr_b32 s28, s26, 1
    s_lshl_b32 s28, s28, 3
    s_and_b32 s29, s27, 7
    s_add_u32 s28, s28, s29
    s_and_b32 s30, s26, 1
    s_lshl_b32 s30, s30, 2
    s_lshr_b32 s31, s27, 3
    s_add_u32 s30, s30, s31
    s_lshl_b32 s31, s31, 1
    s_add_u32 s31, s31, s29
    s_and_b32 s31, s31, 7
    s_lshl_b32 s31, s31, 1
    """)
    A(f"""
    v_lshlrev_b32 v2, 4, v0
    v_add_u32 v3, {72*1024}, v2
    v_add_u32 v4, {2*72*1024}, v2
    v_add_u32 v5, {3*72*1024}, v2
    v_lshrrev_b32 v10, 3, v0
    v_bfe_u32 v11, v0, 1, 2
    v_lshrrev_b32 v12, 4, v0
    v_xor_b32 v11, v11, v12
    v_lshlrev_b32 v11, 5, v11
    v_and_b32 v13, 1, v0
    v_lshl_or_b32 v11, v13, 4, v11
    v_lshl_or_b32 v11, v10, 10, v11
    s_lshl_b32 s32, s30, 7
    v_add_u32 v6, s32, v11
    v_add_u32 v7, 7168, v6
    v_add_u32 v8, {2*7168}, v6
    v_add_u32 v9, {3*7168}, v6
    """)
    A(f"""
    v_bfe_u32 v13, v0, 2, 3
    v_lshrrev_b32 v14, 1, v13
    v_lshrrev_b32 v15, 5, v0
    v_lshlrev_b32 v15, 10, v15
    v_lshl_add_u32 v15, v13, 7, v15
    v_and_b32 v16, 3, v0
    v_lshl_add_u32 v15, v16, 3, v15
    s_mul_i32 s33, s3, {D2*4096}
    v_add_u32 v15, s33, v15
    """)
    for c in range(4):
        A(f"v_xor_b32 v16, {c}, v14\nv_lshl_add_u32 v{20+c}, v16, 5, v15")
    A("s_waitcnt lgkmcnt(0)")
    A(f"""
    s_mov_b32 s8, s24
    s_mov_b32 s9, s25
    s_mov_b32 s10, {ACT_BYTES}
    s_mov_b32 s11, 0x20000
    s_mov_b32 s15, 0x20000
    s_mul_i32 s34, s28, {4*72*1024}
    s_mul_i32 s35, s3, {nwo}
    s_mul_i32 s36, s3, {nw2}
    s_sub_u32 s36, s36, {nwo}
    """)
    if STAMP:
        A("s_mov_b32 s84, s24\ns_mov_b32 s85, s25\ns_mov_b32 s86, 0x2000000\ns_mov_b32 s87, 0x20000")
    stamp(A, 0, 1)
    AF = 128; BF = [32, 48]; ACC = 64
    def loads(d):
        G = []
        G.append(f"""
        s_cmp_lt_u32 s31, {nwo}
        s_cselect_b32 s12, s6, s20
        s_cselect_b32 s13, s7, s21
        s_cselect_b32 s14, {512*1024}, s44
        s_cselect_b32 s37, s35, s36
        s_cselect_b32 s38, 0, 16
        s_add_u32 s37, s37, s31
        s_add_u32 s38, s38, s37
        s_lshl_b32 s37, s37, 15
        s_lshl_b32 s38, s38, 10
        s_add_u32 s38, s38, s34
        s_add_u32 m0, s33, {d*4096}
        s_add_u32 s31, s31, 1
        s_cmp_eq_u32 s31, {nsb}
        s_cselect_b32 s31, 0, s31
        buffer_load_dwordx4 v6, s[12:15], s37 offen lds""")
        for o in range(1, 4):
            G.append(f"buffer_load_dwordx4 v{6+o}, s[12:15], s37 offen offset:{1024*o} lds")
        for b in range(4):
            G.append(f"buffer_load_dwordx4 {vr(AF+16*d+4*b,4)}, v{2+b}, s[8:11], s38 offen")
        return G
    A(f"s_mov_b32 s44, {1792*1024}")
    for d in range(D2):
        for g in loads(d): A(g)
    A(f"""
    s_mov_b32 s16, s4
    s_mov_b32 s17, s5
    s_mov_b32 s18, 0x200000
    s_mov_b32 s19, 0x20000
    s_lshr_b32 s39, s28, 1
    s_lshl_b32 s39, s39, 7
    s_lshl_b32 s40, s3, 5
    s_add_u32 s39, s39, s40
    s_and_b32 s40, s28, 1
    s_add_u32 s39, s39, s40
    s_lshl_b32 s39, s39, 10
    s_add_u32 s39, s39, s32
    v_and_b32 v16, 15, v0
    v_lshlrev_b32 v16, 11, v16
    v_lshl_add_u32 v16, v12, 3, v16
    v_add_u32 v16, s39, v16
    """)
    for r in range(ACC, ACC + 64): A(f"v_mov_b32 v{r}, 0")
    def breads(s, d):
        R = []
        for c in range(4):
            for t in range(2):
                R.append(f"ds_read_b64_tr_b16 {vr(BF[s]+4*c+2*t,2)}, v{20+c} offset:{d*4096+t*2048}")
        return R
    def mf(s, d):
        M = []
        for c in range(4):
            for b in range(4):
                a = ACC + 4*(b*4+c)
                M.append(f"v_mfma_f32_16x16x32_bf16 {vr(a,4)}, {vr(BF[s]+4*c,4)}, {vr(AF+16*d+4*b,4)}, {vr(a,4)}")
        return M
    def interleave(M, others):
        n = len(M); k = len(others); done = 0
        for i, m in enumerate(M):
            A(m)
            tgt = (k * (i + 1) + n - 1) // n
            while done < tgt:
                A(others[done]); done += 1
    niter = nsb // D2
    A(f"s_waitcnt vmcnt({8*(D2-1)})")
    stamp(A, 1, 1)
    if STAMP: A(f"s_waitcnt vmcnt(0)")
    for r in breads(0, 0): A(r)
    A("s_mov_b32 s45, 0")
    A.label("K2_LOOP")
    for d in range(D2):
        dn = (d + 1) % D2
        A(f"s_waitcnt vmcnt({8*(D2-2)}) lgkmcnt(0)")
        for r in breads((d + 1) & 1, dn): A(r)
        M = mf(d & 1, d)
        for m in M: A(m)
        for g in loads(d): A(g)
    A(f"s_add_u32 s45, s45, 1\ns_cmp_lt_u32 s45, {niter-1}\ns_cbranch_scc1 K2_LOOP")
    for c in range(4):
        A(f"buffer_load_dwordx2 {vr(24+2*c,2)}, v16, s[16:19], 0 offen offset:{32*c}")
    for d in range(D2):
        if d < D2 - 1:
            A(f"s_waitcnt vmcnt({8*(D2-2-d)+4}) lgkmcnt(0)")
            for r in breads((d + 1) & 1, d + 1): A(r)
        else:
            A("s_waitcnt lgkmcnt(0)")
        for m in mf(d & 1, d): A(m)
    stamp(A, 2, 1)
    A("s_barrier")
    A(f"s_lshl_b32 s46, s3, 14\nv_add_u32 v17, s46, v2")
    for t in range(16):
        A(f"ds_write_b128 v17, {vr(ACC+4*t,4)} offset:{1024*t}")
    A(f"s_lshl_b32 s46, s3, 12\nv_add_u32 v17, s46, v2")
    A("s_waitcnt lgkmcnt(0)\ns_barrier")
    for w in range(4):
        for c in range(4):
            A(f"ds_read_b128 {vr(ACC+16*w+4*c,4)}, v17 offset:{16384*w+1024*c}")
    A(f"""
    s_mov_b32 s16, s22
    s_mov_b32 s17, s23
    s_waitcnt vmcnt(0) lgkmcnt(0)
    """)
    for c in range(4):
        for q in (0, 2):
            a = ACC + 4*c + q
            A(f"v_pk_add_f32 {vr(a,2)}, {vr(a,2)}, {vr(a+16,2)}")
            A(f"v_pk_add_f32 {vr(a+32,2)}, {vr(a+32,2)}, {vr(a+48,2)}")
            x = 24 + 2*c + q//2
            A(f"v_lshlrev_b32 v18, 16, v{x}\nv_and_b32 v19, 0xffff0000, v{x}")
            A(f"v_pk_add_f32 {vr(a,2)}, {vr(a,2)}, {vr(a+32,2)}")
            A(f"v_pk_add_f32 {vr(a,2)}, {vr(a,2)}, v[18:19]")
            A(f"v_cvt_pk_bf16_f32 v{x}, v{a}, v{a+1}")
        A(f"buffer_store_dwordx2 {vr(24+2*c,2)}, v16, s[16:19], 0 offen offset:{32*c}")
    if STAMP:
        A("s_waitcnt vmcnt(0)")
        stamp(A, 3, 1)
    A.label("K2_END")
    A("s_endpgm")

def kd(A, name, vg):
    A.raw(f""".p2align 6
.amdhsa_kernel {name}
  .amdhsa_next_free_vgpr {vg}
  .amdhsa_next_free_sgpr 96
  .amdhsa_accum_offset {vg}
  .amdhsa_group_segment_fixed_size 0
  .amdhsa_kernarg_size 72
  .amdhsa_user_sgpr_count 2
  .amdhsa_user_sgpr_kernarg_segment_ptr 1
  .amdhsa_system_sgpr_workgroup_id_x 1
.end_amdhsa_kernel""")

def main():
    out = sys.argv[1]
    A = Asm()
    A.raw(HEADER.rstrip())
    A.raw(f"; @launch kernel=k1_kernel grid=(256,1,1) block=(512,1,1) lds={K1_LDS}")
    A.raw(f"; @launch kernel=k2_kernel grid=(256,1,1) block=({NW2*64},1,1) lds={max(NW2*D2*4096, 65536)}")
    A.raw('.amdgcn_target "amdgcn-amd-amdhsa--gfx950"\n.text')
    k1(A)
    k2(A)
    A.raw('.section .rodata,"a"')
    kd(A, "k1_kernel", 256)
    kd(A, "k2_kernel", 256)
    open(out, "w").write(A.text())
    print("nops inserted:", A.nops)
main()
```

```python
import sys
from asmlib import Asm

NAME = "parallel_sum__sliding_local_dilated__dense_activation_silu__prompt"
HEADER = open('cdna_kernels/' + NAME + '.s.ref').read().split('; Override')[0]

ACT_BYTES = 128 * 72 * 1024
SLOT = 47104
BOFF = 18432
POFF = BOFF + 24576
NSLOT = 3
STAT = NSLOT * SLOT
STATM = STAT + 144 * 16
STATR = STATM + 144 * 4
CSUM = STATR + 144 * 4
K1_LDS = CSUM + 2 * 224 * 4
LOG2E = 0x3fb8aa3b
STAMP = '--stamp' in sys.argv
NODOT = '--nodot' in sys.argv
NODMA = '--nodma' in sys.argv
NOMFMA = '--nomfma' in sys.argv
NOREAD = '--noread' in sys.argv
K2ALT = '--k2alt' in sys.argv

def vr(a, n): return f"v[{a}:{a+n-1}]" if n > 1 else f"v{a}"

def stamp(A, idx, kern):
    if not STAMP: return
    A(f"""
    {'s_memtime' if '--cyc' in sys.argv else 's_memrealtime'} s[90:91]
    s_waitcnt lgkmcnt(0)
    v_mov_b32 v250, s90
    s_lshl_b32 s92, s2, 8
    s_lshl_b32 s93, s3, 5
    s_add_u32 s92, s92, s93
    s_add_u32 s92, s92, {0x1000000 + kern * 0x100000 + idx * 4}
    v_mov_b32 v251, s92
    buffer_store_dword v250, v251, s[84:87], 0 offen
    """)

def k1(A):
    A.raw(".globl k1_kernel\n.p2align 8\n.type k1_kernel,@function\nk1_kernel:")
    A(f"""
    s_cmp_ge_u32 s2, 256
    s_cbranch_scc1 K1_END
    s_load_dwordx4 s[4:7], s[0:1], 0
    s_load_dwordx2 s[20:21], s[0:1], 32
    s_load_dwordx2 s[22:23], s[0:1], 64
    v_lshrrev_b32 v1, 6, v0
    v_and_b32 v0, 63, v0
    v_readfirstlane_b32 s3, v1
    s_and_b32 s24, s2, 7
    s_lshr_b32 s25, s2, 3
    s_and_b32 s26, s24, 1
    s_lshl_b32 s26, s26, 3
    s_and_b32 s27, s25, 7
    s_add_u32 s26, s26, s27
    s_lshr_b32 s28, s24, 1
    s_lshl_b32 s28, s28, 2
    s_lshr_b32 s29, s25, 3
    s_add_u32 s28, s28, s29
    s_lshl_b32 s29, s29, 1
    s_add_u32 s30, s27, s29
    s_and_b32 s30, s30, 7
    """)
    A(f"""
    v_lshrrev_b32 v2, 3, v0
    v_and_b32 v3, 7, v0
    v_lshrrev_b32 v4, 1, v2
    v_xor_b32 v5, v3, v4
    v_lshlrev_b32 v5, 4, v5
    """)
    A(f"""
    s_lshr_b32 s31, s3, 2
    s_and_b32 s32, s3, 3
    s_lshl_b32 s33, s26, 7
    s_lshl_b32 s34, s32, 5
    s_add_u32 s34, s34, s33
    s_add_u32 s34, s34, s31
    s_lshl_b32 s34, s34, 10
    v_lshlrev_b32 v6, 11, v2
    v_add3_u32 v10, v6, v5, s34
    v_xor_b32 v11, 64, v10
    v_add_u32 v11, 0x4000, v11
    """)
    A(f"""
    v_bfe_u32 v7, v0, 1, 2
    v_and_b32 v8, 1, v4
    s_and_b32 s35, s3, 1
    s_lshl_b32 s36, s35, 1
    v_or_b32 v8, s36, v8
    v_xor_b32 v7, v7, v8
    v_lshlrev_b32 v7, 5, v7
    v_and_b32 v8, 1, v0
    v_lshl_or_b32 v7, v8, 4, v7
    s_lshl_b32 s36, s3, 3
    v_add_u32 v9, s36, v2
    """)
    A(f"""
    v_and_b32 v20, 15, v0
    v_lshrrev_b32 v21, 4, v0
    v_bfe_u32 v22, v0, 2, 2
    v_and_b32 v23, 3, v0
    v_lshrrev_b32 v24, 1, v20
    v_xor_b32 v24, v21, v24
    v_lshlrev_b32 v24, 4, v24
    v_lshl_or_b32 v24, v20, 7, v24
    v_lshrrev_b32 v25, 1, v22
    v_and_b32 v26, 1, v21
    v_lshl_or_b32 v25, v26, 1, v25
    v_mul_u32_u24 v27, 3072, v21
    v_lshl_add_u32 v27, v22, 7, v27
    v_lshl_add_u32 v27, v23, 3, v27
    v_add_u32 v27, {BOFF}, v27
    v_lshlrev_b32 v12, 4, v0
    """)
    A("s_waitcnt lgkmcnt(0)")
    A(f"""
    s_mov_b32 s8, s4
    s_mov_b32 s9, s5
    s_mov_b32 s10, 0x200000
    s_mov_b32 s11, 0x20000
    s_mov_b32 s15, 0x20000
    s_mov_b32 s16, s22
    s_mov_b32 s17, s23
    s_mov_b32 s18, {ACT_BYTES}
    s_mov_b32 s19, 0x20000
    s_mov_b32 s40, 0x3f803f80
    """)
    if STAMP:
        A("s_mov_b32 s84, s22\ns_mov_b32 s85, s23\ns_mov_b32 s86, 0x2000000\ns_mov_b32 s87, 0x20000")
    stamp(A, 0, 0)
    A(f"""
    s_cmp_ge_u32 s28, 8
    s_cbranch_scc1 K1_FFN
    """)
    k1_path(A, 'qkv')
    A.label("K1_FFN"); A.reset_hist()
    A(f"""
    s_mov_b32 s12, s20
    s_mov_b32 s13, s21
    s_mov_b32 s14, {512*1792*2}
    s_sub_u32 s37, s28, 8
    s_mul_i32 s38, s37, 448
    s_and_b32 s39, s37, 1
    s_lshl_b32 s41, s39, 6
    s_add_u32 s41, s41, s38
    s_cmp_eq_u32 s39, 0
    s_cselect_b32 s42, 384, 0
    s_add_u32 s42, s42, s38
    v_mul_u32_u24 v13, 3584, v9
    v_add3_u32 v13, v13, v7, s41
    s_cmp_ge_u32 s3, 4
    s_cbranch_scc1 K1_FFN3
    """)
    k1_path(A, 'ffn4')
    A.label("K1_FFN3"); A.reset_hist()
    k1_path(A, 'ffn3')
    A.label("K1_END")
    A("s_endpgm")

def k1_path(A, kind):
    P = kind.upper()
    qkv = kind == 'qkv'
    stride = 3072 if qkv else 3584
    nA = 5 if qkv else 4
    nB = {'qkv': 3, 'ffn4': 4, 'ffn3': 3}[kind]
    aA = [28, 29]
    aH = [30, 31]
    aS = 32
    aSH = 33
    aB = [[34 + 2*j, 35 + 2*j] for j in range(4)]
    RS = [42, 43, 44, 45, 46, 47]
    CS = [48, 49, 50, 51]
    ST = 52
    F = [64, 64 + 32]
    ACC = 128
    def fA(s, i): return F[s] + 4 * i
    def fB(s, j): return F[s] + 4 * (nA + j)
    hs = 's31' if qkv else 's35'
    if qkv:
        A(f"""
        s_mov_b32 s12, s6
        s_mov_b32 s13, s7
        s_mov_b32 s14, {512*1536*2}
        s_lshl_b32 s41, s28, 7
        v_mul_u32_u24 v13, 3072, v9
        v_add3_u32 v13, v13, v7, s41
        """)
        A(f"""
        s_sub_u32 s36, s33, 16
        s_add_u32 s36, s36, s35
        s_lshl_b32 s36, s36, 10
        s_lshl_b32 s37, s35, 6
        v_xor_b32 v14, s37, v5
        v_add3_u32 v14, v14, v6, s36
        """)
    elif kind == 'ffn3':
        A(f"""
        v_lshrrev_b32 v15, 2, v0
        s_lshl_b32 s36, s32, 4
        v_add_u32 v16, s36, v15
        v_mul_u32_u24 v16, 3584, v16
        v_bfe_u32 v17, v0, 1, 1
        v_lshrrev_b32 v18, 5, v0
        v_xor_b32 v17, v17, v18
        v_lshlrev_b32 v17, 5, v17
        v_and_b32 v18, 1, v0
        v_lshl_or_b32 v17, v18, 4, v17
        v_add3_u32 v14, v16, v17, s42
        """)
    A(f"""
    s_lshl_b32 s44, s3, 11
    s_mul_i32 s45, s3, 3072
    s_add_u32 s45, s45, {BOFF}
    """)
    if qkv:
        A(f"s_lshl_b32 s46, s35, 10\ns_add_u32 s46, s46, 16384")
        A("s_lshr_b32 s47, s3, 1\ns_cmp_eq_u32 s47, 2\ns_cselect_b32 s47, 1, 0")
    elif kind == 'ffn3':
        A(f"s_lshl_b32 s46, s32, 10\ns_add_u32 s46, s46, {POFF}")
    A("s_mov_b32 s48, 0")

    cnt = [0]
    def dma_list():
        G = []
        G.append(f"""
        s_lshl_b32 s50, s30, 7
        s_mul_i32 s51, s30, {64*stride}
        s_add_u32 m0, s44, s48
        s_add_u32 s52, s45, s48
        buffer_load_dwordx4 v10, s[8:11], s50 offen lds""")
        G.append(f"""
        s_mov_b32 m0, s52
        s_add_u32 s53, s44, s48
        buffer_load_dwordx4 v13, s[12:15], s51 offen lds""")
        if qkv:
            G.append(f"buffer_load_dwordx4 v13, s[12:15], s51 offen offset:1024 lds")
            G.append(f"buffer_load_dwordx4 v13, s[12:15], s51 offen offset:2048 lds")
        else:
            G.append(f"""
            s_add_u32 m0, s52, {1024-128}
            buffer_load_dwordx4 v13, s[12:15], s51 offen offset:128 lds""")
            G.append(f"""
            s_add_u32 m0, s52, {2048-256}
            buffer_load_dwordx4 v13, s[12:15], s51 offen offset:256 lds""")
        G.append(f"""
        s_add_u32 m0, s53, 1024
        buffer_load_dwordx4 v11, s[8:11], s50 offen lds""")
        if qkv:
            cnt[0] += 1
            lb = f"{P}_XD{cnt[0]}"
            G.append(('X', lb))
        elif kind == 'ffn3':
            G.append(f"""
            s_add_u32 m0, s46, s48
            buffer_load_dwordx4 v14, s[12:15], s51 offen lds""")
        G.append(f"""
        s_add_u32 s30, s30, 1
        s_and_b32 s30, s30, 7
        s_add_u32 s48, s48, {SLOT}
        s_cmp_eq_u32 s48, {NSLOT*SLOT}
        s_cselect_b32 s48, 0, s48""")
        return G
    def emit_g(g):
        if isinstance(g, tuple):
            A(f"""
            s_cmp_eq_u32 s47, 0
            s_cbranch_scc1 {g[1]}
            s_add_u32 m0, s46, s48
            buffer_load_dwordx4 v14, s[8:11], s50 offen lds""")
            A.label(g[1])
        else:
            A(g)
    ndma = 6 if kind == 'ffn3' else 5
    for st in range(3):
        for g in dma_list(): emit_g(g)

    if qkv:
        A(f"s_lshl_b32 s36, s31, 13")
    else:
        A(f"s_lshl_b32 s36, s35, 13")
    A(f"""
    s_lshl_b32 s37, {hs}, 6
    v_xor_b32 v{aA[0]}, s37, v24
    v_add_u32 v{aA[0]}, s36, v{aA[0]}
    v_xor_b32 v{aA[1]}, 64, v{aA[0]}
    s_lshl_b32 s36, s3, 11
    v_add_u32 v{aS}, s36, v12
    s_mul_i32 s54, {hs}, 12288
    s_sub_u32 s55, 12288, s54
    """) if not False else None
    if kind != 'qkv':
        A("s_sub_u32 s37, s28, 8")
    addr_regs = [aA[0], aA[1], aS]
    if qkv:
        A(f"""
        v_and_b32 v15, 7, v20
        v_lshrrev_b32 v16, 1, v15
        v_xor_b32 v16, v21, v16
        v_lshlrev_b32 v16, 4, v16
        v_lshl_or_b32 v16, v15, 7, v16
        s_lshl_b32 s36, s31, 10
        s_add_u32 s36, s36, 16384
        v_add_u32 v{aH[0]}, s36, v16
        v_xor_b32 v{aH[1]}, 64, v{aH[0]}
        s_lshl_b32 s36, s35, 10
        s_add_u32 s36, s36, 16384
        v_add_u32 v{aSH}, s36, v12
        v_xor_b32 v15, s32, v25
        v_lshl_add_u32 v15, v15, 5, v27
        v_add_u32 v{aB[0][0]}, s54, v15
        v_add_u32 v{aB[0][1]}, s55, v15
        """)
        addr_regs += [aH[0], aH[1], aSH, aB[0][0], aB[0][1]]
        bsrc = [(0, 0), (0, 1024), (0, 2048)]
        tstep = [512] * 3
    elif kind == 'ffn4':
        A("s_lshr_b32 s36, s3, 1\ns_lshl_b32 s36, s36, 10\ns_add_u32 s54, s54, s36\ns_add_u32 s55, s55, s36")
        for c in range(4):
            A(f"""
            v_xor_b32 v15, {c}, v25
            v_lshl_add_u32 v15, v15, 5, v27
            v_add_u32 v{aB[c][0]}, s54, v15
            v_add_u32 v{aB[c][1]}, s55, v15
            """)
            addr_regs += aB[c]
        bsrc = [(c, 0) for c in range(4)]
        tstep = [512] * 4
    else:
        A("s_lshr_b32 s36, s3, 1\ns_and_b32 s36, s36, 1\ns_lshl_b32 s56, s36, 1")
        for c in range(2):
            A(f"""
            v_xor_b32 v15, s56, v25
            v_xor_b32 v15, {c}, v15
            v_lshl_add_u32 v15, v15, 5, v27
            v_add_u32 v{aB[c][0]}, s54, v15
            v_add_u32 v{aB[c][1]}, s55, v15
            """)
            addr_regs += aB[c]
        A(f"""
        v_lshlrev_b32 v15, 9, v21
        v_lshl_add_u32 v15, v22, 6, v15
        v_lshl_add_u32 v15, v23, 3, v15
        v_xor_b32 v16, s36, v26
        v_lshl_add_u32 v15, v16, 5, v15
        s_lshl_b32 s57, s35, 11
        s_add_u32 s58, s57, {POFF}
        s_sub_u32 s57, {POFF + 2048}, s57
        v_add_u32 v{aB[2][0]}, s58, v15
        v_add_u32 v{aB[2][1]}, s57, v15
        """)
        addr_regs += aB[2]
        bsrc = [(0, 2048), (1, 2048), (2, 0)]
        tstep = [512, 512, 256]
    nacc = {'qkv': 14, 'ffn4': 16, 'ffn3': 12}[kind]
    for r in range(ACC, ACC + 4 * nacc): A(f"v_mov_b32 v{r}, 0")
    for r in RS + CS: A(f"v_mov_b32 v{r}, 0")

    def reads(s, step):
        R = []
        for j in range(nB):
            ai, imm = bsrc[j]
            R.append(f"ds_read_b64_tr_b16 {vr(fB(s,j),2)}, v{aB[ai][step]} offset:{imm}")
            R.append(f"ds_read_b64_tr_b16 {vr(fB(s,j)+2,2)}, v{aB[ai][step]} offset:{imm+tstep[j]}")
        RA = []
        for i in range(4):
            RA.append(f"ds_read_b128 {vr(fA(s,i),4)}, v{aA[step]} offset:{2048*i}")
        if qkv: RA.append(f"ds_read_b128 {vr(fA(s,4),4)}, v{aH[step]}")
        return [RA[0]] + R[0:2] + RA[1:] + R[2:]
    def mfmas(s):
        M = []
        if qkv:
            for i in range(4): M.append(f"v_mfma_f32_16x16x32_bf16 {vr(ACC+4*i,4)}, {vr(fB(s,0),4)}, {vr(fA(s,i),4)}, {vr(ACC+4*i,4)}")
            for i in range(5):
                a = 4 if i == 0 else i - 1
                d = ACC + 4 * (4 + i)
                M.append(f"v_mfma_f32_16x16x32_bf16 {vr(d,4)}, {vr(fB(s,1),4)}, {vr(fA(s,a),4)}, {vr(d,4)}")
            for i in range(5):
                a = 4 if i == 0 else i - 1
                d = ACC + 4 * (9 + i)
                M.append(f"v_mfma_f32_16x16x32_bf16 {vr(d,4)}, {vr(fA(s,a),4)}, {vr(fB(s,2),4)}, {vr(d,4)}")
        else:
            for j in range(nB):
                for i in range(4):
                    d = ACC + 4 * (i * nB + j)
                    M.append(f"v_mfma_f32_16x16x32_bf16 {vr(d,4)}, {vr(fB(s,j),4)}, {vr(fA(s,i),4)}, {vr(d,4)}")
        if NOMFMA: M = ['s_nop 0'] * len(M)
        return M
    def interleave(M, others):
        n = len(M); k = len(others); done = 0
        for i, m in enumerate(M):
            A(m)
            tgt = (k * (i + 1) + n - 1) // n
            while done < tgt:
                emit_g(others[done]); done += 1

    nst = 3 if qkv else 2
    def wait_stage(n_keep_stages):
        if n_keep_stages == 0:
            A("s_waitcnt vmcnt(0)")
        else:
            A(f"s_waitcnt vmcnt({ndma*n_keep_stages})")
    wait_stage(2)
    A("s_barrier")
    stamp(A, 1, 0)
    for r in reads(0, 0): A(r)
    A(f"s_mov_b32 s60, 0\ns_mov_b32 s61, 0")
    A.label(f"{P}_LOOP")
    A("s_waitcnt lgkmcnt(0)")
    oth = reads(1, 1)
    oth += [f"ds_read_b128 {vr(ST,4)}, v{aS}", f"ds_read_b128 {vr(ST+4,4)}, v{aS} offset:1024"]
    if qkv: oth += [f"ds_read_b128 {vr(ST+8,4)}, v{aSH}"]
    cs = []
    for q in range(4):
        for j in range(nB):
            cs.append(f"v_dot2c_f32_bf16 v{CS[j]}, s40, v{fB(0,j)+q}")
    if NODOT: cs = []
    if NOREAD: oth = []
    interleave(mfmas(0), oth + cs)
    A(f"""
    s_add_u32 s61, s61, {SLOT}
    s_cmp_eq_u32 s61, {NSLOT*SLOT}
    s_cselect_b32 s61, 0, s61
    s_cselect_b32 s62, {(-2*SLOT) & 0xffffffff}, {SLOT}
    """.replace(f"s_cselect_b32 s62, {(-2*SLOT) & 0xffffffff}, {SLOT}", f"s_mov_b32 s62, {SLOT}\ns_cselect_b32 s62, {(-2*SLOT) & 0xffffffff}, s62"))
    A(f"""
    s_cmp_ge_u32 s60, 6
    s_cbranch_scc0 {P}_W1
    s_waitcnt vmcnt(0)
    """)
    A.label(f"{P}_W1")
    A(f"s_waitcnt vmcnt({ndma}) lgkmcnt(0)")
    A("s_barrier")
    upd = [f"v_add_u32 v{r}, s62, v{r}" for r in addr_regs]
    rs = []
    for u in range(nst):
        for q in range(4):
            rs.append(f"v_dot2c_f32_bf16 v{RS[2*u]}, s40, v{ST+4*u+q}")
            rs.append(f"v_dot2c_f32_bf16 v{RS[2*u+1]}, v{ST+4*u+q}, v{ST+4*u+q}")
    if NODOT: rs = []
    M = mfmas(1)
    h = len(M) // 2
    for u in upd: A(u)
    interleave(M[:h], ([] if NOREAD else reads(0, 0)) + rs[:8])
    A(f"s_cmp_ge_u32 s60, {0 if NODMA else 5}\ns_cbranch_scc1 {P}_NODMA")
    interleave(M[h:], dma_list())
    A(f"s_branch {P}_JOIN")
    A.label(f"{P}_NODMA")
    for m in M[h:]: A(m)
    A.label(f"{P}_JOIN")
    for r in rs[8:]: A(r)
    A(f"""
    s_add_u32 s60, s60, 1
    s_cmp_lt_u32 s60, 8
    s_cbranch_scc1 {P}_LOOP
    """)
    A("s_waitcnt lgkmcnt(0)")
    stamp(A, 2, 0)
    T = 64
    A("s_nop 2")
    for u in range(nst):
        for x in (RS[2*u], RS[2*u+1]):
            A(f"v_add_f32_dpp v{x}, v{x}, v{x} quad_perm:[1,0,3,2] row_mask:0xf bank_mask:0xf")
    for u in range(nst):
        for x in (RS[2*u], RS[2*u+1]):
            A(f"v_add_f32_dpp v{x}, v{x}, v{x} quad_perm:[2,3,0,1] row_mask:0xf bank_mask:0xf")
    for u in range(nst):
        for x in (RS[2*u], RS[2*u+1]):
            A(f"v_add_f32_dpp v{x}, v{x}, v{x} row_half_mirror row_mask:0xf bank_mask:0xf")
    for j in range(nB):
        A(f"""
        v_mov_b32 v{T+j}, v{CS[j]}
        v_permlane32_swap_b32 v{T+j}, v{CS[j]}
        v_add_f32 v{CS[j]}, v{CS[j]}, v{T+j}
        v_mov_b32 v{T+j}, v{CS[j]}
        v_permlane16_swap_b32 v{T+j}, v{CS[j]}
        v_add_f32 v{CS[j]}, v{CS[j]}, v{T+j}
        """)
    A(f"s_mov_b32 s64, 0x3b000000\ns_mov_b32 s65, 0x3727c5ac\ns_mov_b32 s66, {LOG2E | 0x80000000}")
    for u in range(nst):
        S, Q = RS[2*u], RS[2*u+1]
        o = T + 8 + 4 * u
        A(f"""
        v_mul_f32 v{S}, s64, v{S}
        v_mul_f32 v{Q}, s64, v{Q}
        v_fma_f32 v{Q}, -v{S}, v{S}, v{Q}
        v_max_f32 v{Q}, 0, v{Q}
        v_cvt_pk_bf16_f32 v{S}, v{S}, v{Q}
        v_and_b32 v{Q}, 0xffff0000, v{S}
        v_lshlrev_b32 v{S}, 16, v{S}
        v_add_f32 v{Q}, s65, v{Q}
        v_cvt_pk_bf16_f32 v{Q}, v{Q}, v{Q}
        v_and_b32 v{Q}, 0xffff0000, v{Q}
        v_sqrt_f32 v{Q}, v{Q}
        v_cvt_pk_bf16_f32 v{Q}, v{Q}, v{Q}
        v_and_b32 v{o+3}, 0xffff0000, v{Q}
        v_rcp_f32 v{o+1}, v{o+3}
        v_sub_f32 v{o}, 0, v{S}
        v_mul_f32 v{o+2}, s66, v{o+1}
        """)
    A(f"""
    s_lshl_b32 s36, s3, 4
    v_add_u32 v15, s36, v2
    v_lshlrev_b32 v16, 4, v15
    v_lshlrev_b32 v17, 2, v15
    v_add_u32 v16, {STAT}, v16
    v_add_u32 v17, {STATM}, v17
    ds_write_b128 v16, {vr(T+8,4)}
    ds_write_b128 v16, {vr(T+12,4)} offset:128
    """)
    if qkv:
        A(f"""
        ds_write_b32 v17, v{T+8}
        ds_write_b32 v17, v{T+9} offset:{144*4}
        ds_write_b32 v17, v{T+12} offset:32
        ds_write_b32 v17, v{T+13} offset:{144*4+32}
        s_lshl_b32 s36, s35, 3
        s_add_u32 s36, s36, 128
        v_add_u32 v15, s36, v2
        v_lshlrev_b32 v16, 4, v15
        v_lshlrev_b32 v17, 2, v15
        v_add_u32 v16, {STAT}, v16
        v_add_u32 v17, {STATM}, v17
        ds_write_b128 v16, {vr(T+16,4)}
        ds_write_b32 v17, v{T+16}
        ds_write_b32 v17, v{T+17} offset:{144*4}
        """)
    if qkv:
        A("s_lshl_b32 s67, s32, 6"); cboff = [0, 256, 512]
    elif kind == 'ffn4':
        A("s_lshr_b32 s67, s3, 1\ns_lshl_b32 s67, s67, 8"); cboff = [0, 64, 128, 192]
    else:
        A("s_lshl_b32 s67, s56, 6"); cboff = [512, 576, None]
    A(f"""
    s_mul_i32 s68, {hs}, 896
    s_add_u32 s68, s68, s67
    s_add_u32 s68, s68, {CSUM}
    v_lshl_add_u32 v15, v20, 2, s68
    """)
    for j in range(nB):
        if cboff[j] is not None:
            A(f"ds_write_b32 v15, v{CS[j]} offset:{cboff[j]}")
        else:
            A(f"s_lshl_b32 s69, s56, 5\nv_subrev_u32 v16, s69, v15\nds_write_b32 v16, v{CS[j]} offset:768")
    A("s_waitcnt lgkmcnt(0)\ns_barrier")
    SR = 64
    A(f"""
    s_lshl_b32 s36, {hs}, 10
    s_add_u32 s36, s36, {STAT}
    v_lshl_add_u32 v15, v20, 4, s36
    """)
    for i in range(4): A(f"ds_read_b128 {vr(SR+4*i,4)}, v15 offset:{256*i}")
    CR = 84
    A(f"""
    s_add_u32 s68, s67, {CSUM}
    v_lshl_add_u32 v16, v21, 4, s68
    """)
    A(f"""
    s_lshl_b32 s70, s26, 1
    s_add_u32 s70, s70, {hs}
    s_mul_i32 s70, s70, {4*72*1024}
    """)
    if not qkv:
        for j in range(nB):
            if cboff[j] is not None:
                A(f"ds_read_b128 {vr(CR+4*j,4)}, v16 offset:{cboff[j]}")
                A(f"ds_read_b128 {vr(CR+16+4*j,4)}, v16 offset:{cboff[j]+896}")
            else:
                A(f"v_subrev_u32 v17, s69, v16")
                A(f"ds_read_b128 {vr(CR+4*j,4)}, v17 offset:768")
                A(f"ds_read_b128 {vr(CR+16+4*j,4)}, v17 offset:{768+896}")
        A(f"""
        s_mul_i32 s71, s37, 7
        s_add_u32 s71, s71, 16
        s_cmp_eq_u32 s39, 0
        s_cselect_b32 s72, 6, 0
        s_add_u32 s72, s72, s71
        s_add_u32 s71, s71, s39
        """)
        if kind == 'ffn4':
            A("s_lshr_b32 s73, s3, 1\ns_lshl_b32 s73, s73, 1\ns_add_u32 s71, s71, s73")
        else:
            A("s_lshr_b32 s73, s56, 1\ns_add_u32 s71, s71, s73\ns_add_u32 s71, s71, 4")
            A("s_lshl_b32 s72, s72, 10\ns_add_u32 s72, s72, s70\ns_lshl_b32 s73, s73, 3\ns_add_u32 s72, s72, s73")
        A("s_lshl_b32 s71, s71, 10\ns_add_u32 s71, s71, s70")
        A("s_waitcnt lgkmcnt(0)")
        for j in range(nB):
            for q in (0, 2):
                A(f"v_pk_add_f32 {vr(CR+4*j+q,2)}, {vr(CR+4*j+q,2)}, {vr(CR+16+4*j+q,2)}")
        TM = 100
        OUT = 116
        for i in range(4):
            st = SR + 4 * i
            for j in range(nB):
                a = ACC + 4 * (i * nB + j)
                t = TM + 4 * (j % 4)
                for q in (0, 2):
                    A(f"v_pk_fma_f32 {vr(a+q,2)}, {vr(CR+4*j+q,2)}, {vr(st,2)}, {vr(a+q,2)} op_sel_hi:[1,0,1]")
                for q in (0, 2):
                    A(f"v_pk_mul_f32 {vr(t+q,2)}, {vr(a+q,2)}, {vr(st+2,2)} op_sel_hi:[1,0]")
                for q in range(4): A(f"v_exp_f32 v{t+q}, v{t+q}")
            for j in range(nB):
                t = TM + 4 * (j % 4)
                for q in (0, 2):
                    A(f"v_pk_fma_f32 {vr(t+q,2)}, {vr(t+q,2)}, {vr(st+2,2)}, {vr(st+2,2)} op_sel:[0,1,1] op_sel_hi:[1,1,1]")
                for q in range(4): A(f"v_rcp_f32 v{t+q}, v{t+q}")
            o = OUT + (i % 2) * 8 if False else None
            for j in range(nB):
                a = ACC + 4 * (i * nB + j)
                t = TM + 4 * (j % 4)
                for q in (0, 2):
                    A(f"v_pk_mul_f32 {vr(t+q,2)}, {vr(a+q,2)}, {vr(t+q,2)}")
            base = ACC + 4 * (i * nB)
            for j in range(nB):
                t = TM + 4 * (j % 4)
                A(f"v_cvt_pk_bf16_f32 v{base+2*j}, v{t}, v{t+1}")
                A(f"v_cvt_pk_bf16_f32 v{base+2*j+1}, v{t+2}, v{t+3}")
            A(f"buffer_store_dwordx4 {vr(base,4)}, v12, s[16:19], s71 offen")
            if kind == 'ffn4':
                A(f"buffer_store_dwordx4 {vr(base+4,4)}, v12, s[16:19], s71 offen offset:1024")
            else:
                A(f"buffer_store_dwordx2 {vr(base+4,2)}, v12, s[16:19], s72 offen")
                A(f"s_add_u32 s72, s72, {72*1024}")
            A(f"s_add_u32 s71, s71, {72*1024}")
    else:
        qkv_epilogue(A, ACC, SR, CR)
    stamp(A, 3, 0)
    if STAMP:
        A("s_waitcnt vmcnt(0)")
        stamp(A, 4, 0)
    A("s_endpgm")

def qkv_epilogue(A, ACC, SR, CR):
    A(f"""
    v_and_b32 v17, 7, v20
    s_lshl_b32 s36, s31, 7
    s_add_u32 s36, s36, {STAT + 128*16}
    v_lshl_add_u32 v17, v17, 4, s36
    ds_read_b128 {vr(SR+16,4)}, v17
    ds_read_b128 {vr(CR,4)}, v16
    ds_read_b128 {vr(CR+16,4)}, v16 offset:896
    ds_read_b128 {vr(CR+4,4)}, v16 offset:256
    ds_read_b128 {vr(CR+20,4)}, v16 offset:{256+896}
    v_lshl_add_u32 v17, v20, 2, s68
    ds_read_b32 v{CR+8}, v17 offset:512
    ds_read_b32 v{CR+24}, v17 offset:{512+896}
    """)
    VS = 192
    A(f"""
    s_lshl_b32 s36, s31, 8
    s_add_u32 s36, s36, {STATM}
    v_lshl_add_u32 v17, v21, 4, s36
    """)
    for i in range(4):
        A(f"ds_read_b128 {vr(VS+8*(i+1),4)}, v17 offset:{64*i}")
        A(f"ds_read_b128 {vr(VS+8*(i+1)+4,4)}, v17 offset:{64*i+144*4}")
    A(f"""
    s_lshl_b32 s36, s31, 5
    s_add_u32 s36, s36, {STATM + 128*4}
    v_lshl_add_u32 v17, v26, 4, s36
    ds_read_b128 {vr(VS,4)}, v17
    ds_read_b128 {vr(VS+4,4)}, v17 offset:{144*4}
    """)
    BC = 28; BP = 32; BP0 = 36; MC = 40; ONES = 44
    A(f"""
    v_lshlrev_b32 v18, 2, v21
    v_sub_u32 v18, v20, v18
    s_mov_b32 s74, 0xf149f2ca
    v_mov_b32 v19, s74
    """)
    for r in range(4):
        A(f"""
        v_subrev_u32 v17, {r}, v18
        v_cmp_gt_u32 vcc, 8, v17
        v_cndmask_b32 v{BC+r}, v19, 0, vcc
        v_cmp_gt_i32 vcc, -8, v17
        v_cndmask_b32 v{BP+r}, v19, 0, vcc
        v_cmp_le_i32 vcc, 0, v17
        v_cndmask_b32 v{ONES+r}, 0, -1, vcc
        """.replace(f"v_cndmask_b32 v{BC+r}, v19, 0, vcc", f"v_cndmask_b32_e64 v{BC+r}, v19, 0, vcc")
           .replace(f"v_cndmask_b32 v{BP+r}, v19, 0, vcc", f"v_cndmask_b32_e64 v{BP+r}, v19, 0, vcc")
           .replace(f"v_cndmask_b32 v{ONES+r}, 0, -1, vcc", f"v_cndmask_b32_e64 v{ONES+r}, 0, -1, vcc"))
    A(f"""
    s_mov_b32 s75, 0xffff
    v_bfi_b32 v{MC}, s75, v{ONES}, v{ONES+1}
    v_bfi_b32 v{MC+1}, s75, v{ONES+2}, v{ONES+3}
    s_cmp_eq_u32 s26, 0
    s_cselect_b32 s76, s74, 0
    """)
    for r in range(4):
        A(f"v_min_f32 v{BP0+r}, s76, v{BP+r}")
        A(f"v_mov_b32 v{ONES+r}, s40")
    A("s_waitcnt lgkmcnt(0)")
    for q in (0, 2, 4, 6): A(f"v_pk_add_f32 {vr(CR+q,2)}, {vr(CR+q,2)}, {vr(CR+16+q,2)}")
    A(f"v_add_f32 v{CR+8}, v{CR+8}, v{CR+24}")
    QP = 232; KP = 240; VP = 52
    def corr_sw(a, st, cs, dst):
        for q in (0, 2):
            A(f"v_pk_fma_f32 {vr(a+q,2)}, {vr(cs+q,2)}, {vr(st,2)}, {vr(a+q,2)} op_sel_hi:[1,0,1]")
        for q in (0, 2):
            A(f"v_pk_mul_f32 {vr(a+q,2)}, {vr(a+q,2)}, {vr(st,2)} op_sel:[0,1] op_sel_hi:[1,1]")
        A(f"v_cvt_pk_bf16_f32 v{dst}, v{a}, v{a+1}")
        A(f"v_cvt_pk_bf16_f32 v{dst+1}, v{a+2}, v{a+3}")
    for i in range(4): corr_sw(ACC + 4*i, SR + 4*i, CR, QP + 2*i)
    for i in range(5): corr_sw(ACC + 4*(4+i), SR + (16 if i == 0 else 4*(i-1)), CR + 4, KP + 2*i)
    for b in range(4):
        A(f"v_mfma_f32_16x16x16_bf16 {vr(ACC+8*b,4)}, {vr(KP+2*(b+1),2)}, {vr(QP+2*b,2)}, {vr(BC,4)}")
        A(f"v_mfma_f32_16x16x16_bf16 {vr(ACC+8*b+4,4)}, {vr(KP+2*b,2)}, {vr(QP+2*b,2)}, {vr(BP0 if b == 0 else BP,4)}")
    for i in range(5):
        a = ACC + 4*(9+i); vs = VS + 8*i
        for q in (0, 2):
            A(f"v_pk_fma_f32 {vr(a+q,2)}, {vr(vs+q,2)}, {vr(CR+8,2)}, {vr(a+q,2)} op_sel_hi:[1,0,1]")
        for q in (0, 2):
            A(f"v_pk_mul_f32 {vr(a+q,2)}, {vr(a+q,2)}, {vr(vs+4+q,2)}")
        A(f"v_cvt_pk_bf16_f32 v{VP+2*i}, v{a}, v{a+1}")
        A(f"v_cvt_pk_bf16_f32 v{VP+2*i+1}, v{a+2}, v{a+3}")
    MX = 64; TT = 68
    A(f"s_mov_b32 s77, 0x3eb8aa3b")
    for b in range(4):
        c = ACC + 8*b
        for r in range(4): A(f"v_max_f32 v{c+r}, v{c+r}, v{c+4+r}")
    for b in range(4):
        c = ACC + 8*b
        A(f"v_max3_f32 v{MX+b}, v{c}, v{c+1}, v{c+2}")
    for b in range(4):
        c = ACC + 8*b
        A(f"v_max_f32 v{MX+b}, v{MX+b}, v{c+3}")
    for sw in ("v_permlane32_swap_b32", "v_permlane16_swap_b32"):
        for b in range(4): A(f"v_mov_b32 v{TT+b}, v{MX+b}")
        for b in range(4): A(f"{sw} v{TT+b}, v{MX+b}")
        for b in range(4): A(f"v_max_f32 v{MX+b}, v{MX+b}, v{TT+b}")
    for b in range(4): A(f"v_mul_f32 v{MX+b}, s77, v{MX+b}")
    for b in range(4):
        c = ACC + 8*b
        for r in range(4): A(f"v_fma_f32 v{c+r}, v{c+r}, s77, -v{MX+b}")
        for r in range(4): A(f"v_exp_f32 v{c+r}, v{c+r}")
    for b in range(4):
        c = ACC + 8*b
        A(f"v_cvt_pk_bf16_f32 v{c}, v{c}, v{c+1}")
        A(f"v_cvt_pk_bf16_f32 v{c+1}, v{c+2}, v{c+3}")
        A(f"v_bfi_b32 v{c+4}, v{MC}, 0, v{c}")
        A(f"v_bfi_b32 v{c+5}, v{MC+1}, 0, v{c+1}")
        A(f"v_and_b32 v{c+6}, v{MC}, v{c}")
        A(f"v_and_b32 v{c+7}, v{MC+1}, v{c+1}")
    OD = 72
    for b in range(4):
        c = ACC + 8*b
        A(f"v_mfma_f32_16x16x32_bf16 {vr(OD+8*b,4)}, {vr(VP+2*b,4)}, {vr(c+4,4)}, 0")
        A(f"v_mfma_f32_16x16x32_bf16 {vr(OD+8*b+4,4)}, {vr(ONES,4)}, {vr(c+4,4)}, 0")
    A(f"""
    s_lshl_b32 s71, s28, 1
    s_lshr_b32 s72, s32, 1
    s_add_u32 s71, s71, s72
    s_lshl_b32 s71, s71, 10
    s_add_u32 s71, s71, s70
    s_lshl_b32 s72, s35, 3
    s_add_u32 s71, s71, s72
    """)
    for b in range(4): A(f"v_rcp_f32 v{OD+8*b+4}, v{OD+8*b+4}")
    for b in range(4):
        o = OD + 8*b
        for q in (0, 2):
            A(f"v_pk_mul_f32 {vr(o+q,2)}, {vr(o+q,2)}, {vr(o+4,2)} op_sel_hi:[1,0]")
        A(f"v_cvt_pk_bf16_f32 v{o}, v{o}, v{o+1}")
        A(f"v_cvt_pk_bf16_f32 v{o+1}, v{o+2}, v{o+3}")
        A(f"buffer_store_dwordx2 {vr(o,2)}, v12, s[16:19], s71 offen")
        A(f"s_add_u32 s71, s71, {72*1024}")

NW2 = 4
D2 = 6
def k2(A):
    nsb = 72 // NW2; nwo = 16 // NW2; nw2 = 56 // NW2
    A.reset_hist()
    A.raw(".globl k2_kernel\n.p2align 8\n.type k2_kernel,@function\nk2_kernel:")
    A(f"""
    s_cmp_ge_u32 s2, 256
    s_cbranch_scc1 K2_END
    s_load_dwordx2 s[4:5], s[0:1], 0
    s_load_dwordx2 s[6:7], s[0:1], 16
    s_load_dwordx4 s[20:23], s[0:1], 40
    s_load_dwordx2 s[24:25], s[0:1], 64
    v_lshrrev_b32 v1, 6, v0
    v_and_b32 v0, 63, v0
    v_readfirstlane_b32 s3, v1
    s_and_b32 s26, s2, 7
    s_lshr_b32 s27, s2, 3
    """)
    if K2ALT:
        A("""
        s_lshr_b32 s29, s27, 3
        s_lshl_b32 s28, s26, 2
        s_add_u32 s28, s28, s29
        s_and_b32 s30, s27, 7
        s_lshl_b32 s31, s29, 1
        s_add_u32 s31, s31, s30
        s_and_b32 s31, s31, 7
        s_lshl_b32 s31, s31, 1
        """)
    else:
        A("""
    s_lshr_b32 s28, s26, 1
    s_lshl_b32 s28, s28, 3
    s_and_b32 s29, s27, 7
    s_add_u32 s28, s28, s29
    s_and_b32 s30, s26, 1
    s_lshl_b32 s30, s30, 2
    s_lshr_b32 s31, s27, 3
    s_add_u32 s30, s30, s31
    s_lshl_b32 s31, s31, 1
    s_add_u32 s31, s31, s29
    s_and_b32 s31, s31, 7
    s_lshl_b32 s31, s31, 1
    """)
    A(f"""
    v_lshlrev_b32 v2, 4, v0
    v_add_u32 v3, {72*1024}, v2
    v_add_u32 v4, {2*72*1024}, v2
    v_add_u32 v5, {3*72*1024}, v2
    v_lshrrev_b32 v10, 3, v0
    v_bfe_u32 v11, v0, 1, 2
    v_lshrrev_b32 v12, 4, v0
    v_xor_b32 v11, v11, v12
    v_lshlrev_b32 v11, 5, v11
    v_and_b32 v13, 1, v0
    v_lshl_or_b32 v11, v13, 4, v11
    v_lshl_or_b32 v11, v10, 10, v11
    s_lshl_b32 s32, s30, 7
    v_add_u32 v6, s32, v11
    v_add_u32 v7, 7168, v6
    v_add_u32 v8, {2*7168}, v6
    v_add_u32 v9, {3*7168}, v6
    """)
    A(f"""
    v_bfe_u32 v13, v0, 2, 3
    v_lshrrev_b32 v14, 1, v13
    v_lshrrev_b32 v15, 5, v0
    v_lshlrev_b32 v15, 10, v15
    v_lshl_add_u32 v15, v13, 7, v15
    v_and_b32 v16, 3, v0
    v_lshl_add_u32 v15, v16, 3, v15
    s_mul_i32 s33, s3, {D2*4096}
    v_add_u32 v15, s33, v15
    """)
    for c in range(4):
        A(f"v_xor_b32 v16, {c}, v14\nv_lshl_add_u32 v{20+c}, v16, 5, v15")
    A("s_waitcnt lgkmcnt(0)")
    A(f"""
    s_mov_b32 s8, s24
    s_mov_b32 s9, s25
    s_mov_b32 s10, {ACT_BYTES}
    s_mov_b32 s11, 0x20000
    s_mov_b32 s15, 0x20000
    s_mul_i32 s34, s28, {4*72*1024}
    s_mul_i32 s35, s3, {nwo}
    s_mul_i32 s36, s3, {nw2}
    s_sub_u32 s36, s36, {nwo}
    """)
    if STAMP:
        A("s_mov_b32 s84, s24\ns_mov_b32 s85, s25\ns_mov_b32 s86, 0x2000000\ns_mov_b32 s87, 0x20000")
    stamp(A, 0, 1)
    AF = 128; BF = [32, 48]; ACC = 64
    def loads(d):
        G = []
        G.append(f"""
        s_cmp_lt_u32 s31, {nwo}
        s_cselect_b32 s12, s6, s20
        s_cselect_b32 s13, s7, s21
        s_cselect_b32 s14, {512*1024}, s44
        s_cselect_b32 s37, s35, s36
        s_cselect_b32 s38, 0, 16
        s_add_u32 s37, s37, s31
        s_add_u32 s38, s38, s37
        s_lshl_b32 s37, s37, 15
        s_lshl_b32 s38, s38, 10
        s_add_u32 s38, s38, s34
        s_add_u32 m0, s33, {d*4096}
        s_add_u32 s31, s31, 1
        s_cmp_eq_u32 s31, {nsb}
        s_cselect_b32 s31, 0, s31
        buffer_load_dwordx4 v6, s[12:15], s37 offen lds""")
        for o in range(1, 4):
            G.append(f"buffer_load_dwordx4 v{6+o}, s[12:15], s37 offen offset:{1024*o} lds")
        for b in range(4):
            G.append(f"buffer_load_dwordx4 {vr(AF+16*d+4*b,4)}, v{2+b}, s[8:11], s38 offen")
        return G
    A(f"s_mov_b32 s44, {1792*1024}")
    for d in range(D2):
        for g in loads(d): A(g)
    A(f"""
    s_mov_b32 s16, s4
    s_mov_b32 s17, s5
    s_mov_b32 s18, 0x200000
    s_mov_b32 s19, 0x20000
    s_lshr_b32 s39, s28, 1
    s_lshl_b32 s39, s39, 7
    s_lshl_b32 s40, s3, 5
    s_add_u32 s39, s39, s40
    s_and_b32 s40, s28, 1
    s_add_u32 s39, s39, s40
    s_lshl_b32 s39, s39, 10
    s_add_u32 s39, s39, s32
    v_and_b32 v16, 15, v0
    v_lshlrev_b32 v16, 11, v16
    v_lshl_add_u32 v16, v12, 3, v16
    v_add_u32 v16, s39, v16
    """)
    for r in range(ACC, ACC + 64): A(f"v_mov_b32 v{r}, 0")
    def breads(s, d):
        R = []
        for c in range(4):
            for t in range(2):
                R.append(f"ds_read_b64_tr_b16 {vr(BF[s]+4*c+2*t,2)}, v{20+c} offset:{d*4096+t*2048}")
        return R
    def mf(s, d):
        M = []
        for c in range(4):
            for b in range(4):
                a = ACC + 4*(b*4+c)
                M.append(f"v_mfma_f32_16x16x32_bf16 {vr(a,4)}, {vr(BF[s]+4*c,4)}, {vr(AF+16*d+4*b,4)}, {vr(a,4)}")
        return M
    def interleave(M, others):
        n = len(M); k = len(others); done = 0
        for i, m in enumerate(M):
            A(m)
            tgt = (k * (i + 1) + n - 1) // n
            while done < tgt:
                A(others[done]); done += 1
    niter = nsb // D2
    A(f"s_waitcnt vmcnt({8*(D2-1)})")
    stamp(A, 1, 1)
    if STAMP: A(f"s_waitcnt vmcnt(0)")
    for r in breads(0, 0): A(r)
    A("s_mov_b32 s45, 0")
    A.label("K2_LOOP")
    for d in range(D2):
        dn = (d + 1) % D2
        A(f"s_waitcnt vmcnt({8*(D2-2)}) lgkmcnt(0)")
        for r in breads((d + 1) & 1, dn): A(r)
        M = mf(d & 1, d)
        for m in M: A(m)
        for g in loads(d): A(g)
    A(f"s_add_u32 s45, s45, 1\ns_cmp_lt_u32 s45, {niter-1}\ns_cbranch_scc1 K2_LOOP")
    for c in range(4):
        A(f"buffer_load_dwordx2 {vr(24+2*c,2)}, v16, s[16:19], 0 offen offset:{32*c}")
    for d in range(D2):
        if d < D2 - 1:
            A(f"s_waitcnt vmcnt({8*(D2-2-d)+4}) lgkmcnt(0)")
            for r in breads((d + 1) & 1, d + 1): A(r)
        else:
            A("s_waitcnt lgkmcnt(0)")
        for m in mf(d & 1, d): A(m)
    stamp(A, 2, 1)
    A("s_barrier")
    A(f"s_lshl_b32 s46, s3, 14\nv_add_u32 v17, s46, v2")
    for t in range(16):
        A(f"ds_write_b128 v17, {vr(ACC+4*t,4)} offset:{1024*t}")
    A(f"s_lshl_b32 s46, s3, 12\nv_add_u32 v17, s46, v2")
    A("s_waitcnt lgkmcnt(0)\ns_barrier")
    for w in range(4):
        for c in range(4):
            A(f"ds_read_b128 {vr(ACC+16*w+4*c,4)}, v17 offset:{16384*w+1024*c}")
    A(f"""
    s_mov_b32 s16, s22
    s_mov_b32 s17, s23
    s_waitcnt vmcnt(0) lgkmcnt(0)
    """)
    for c in range(4):
        for q in (0, 2):
            a = ACC + 4*c + q
            A(f"v_pk_add_f32 {vr(a,2)}, {vr(a,2)}, {vr(a+16,2)}")
            A(f"v_pk_add_f32 {vr(a+32,2)}, {vr(a+32,2)}, {vr(a+48,2)}")
            x = 24 + 2*c + q//2
            A(f"v_lshlrev_b32 v18, 16, v{x}\nv_and_b32 v19, 0xffff0000, v{x}")
            A(f"v_pk_add_f32 {vr(a,2)}, {vr(a,2)}, {vr(a+32,2)}")
            A(f"v_pk_add_f32 {vr(a,2)}, {vr(a,2)}, v[18:19]")
            A(f"v_cvt_pk_bf16_f32 v{x}, v{a}, v{a+1}")
        A(f"buffer_store_dwordx2 {vr(24+2*c,2)}, v16, s[16:19], 0 offen offset:{32*c}")
    if STAMP:
        A("s_waitcnt vmcnt(0)")
        stamp(A, 3, 1)
    A.label("K2_END")
    A("s_endpgm")

def kd(A, name, vg):
    A.raw(f""".p2align 6
.amdhsa_kernel {name}
  .amdhsa_next_free_vgpr {vg}
  .amdhsa_next_free_sgpr 96
  .amdhsa_accum_offset {vg}
  .amdhsa_group_segment_fixed_size 0
  .amdhsa_kernarg_size 72
  .amdhsa_user_sgpr_count 2
  .amdhsa_user_sgpr_kernarg_segment_ptr 1
  .amdhsa_system_sgpr_workgroup_id_x 1
.end_amdhsa_kernel""")

def main():
    out = sys.argv[1]
    A = Asm()
    A.raw(HEADER.rstrip())
    A.raw(f"; @launch kernel=k1_kernel grid=(256,1,1) block=(512,1,1) lds={K1_LDS}")
    A.raw(f"; @launch kernel=k2_kernel grid=(256,1,1) block=({NW2*64},1,1) lds={max(NW2*D2*4096, 65536)}")
    A.raw('.amdgcn_target "amdgcn-amd-amdhsa--gfx950"\n.text')
    k1(A)
    k2(A)
    A.raw('.section .rodata,"a"')
    kd(A, "k1_kernel", 256)
    kd(A, "k2_kernel", 256)
    open(out, "w").write(A.text())
    print("nops inserted:", A.nops)
main()
```

```python
import re

_REG = re.compile(r'^(-|abs\()?([vsa])(\d+)\)?$')
_RNG = re.compile(r'^(-)?([vsa])\[(\d+):(\d+)\]$')

def regs_of(op):
    op = op.strip()
    m = _REG.match(op)
    if m: return [(m.group(2), int(m.group(3)))]
    m = _RNG.match(op)
    if m: return [(m.group(2), i) for i in range(int(m.group(3)), int(m.group(4)) + 1)]
    if op == 'vcc': return [('s', 106), ('s', 107)]
    if op == 'exec': return [('s', 126), ('s', 127)]
    if op == 'm0': return [('s', 124)]
    return []

TRANS = ('v_exp_f32', 'v_log_f32', 'v_rcp_f32', 'v_rsq_f32', 'v_sqrt_f32', 'v_sin_f32', 'v_cos_f32')

class Ins:
    def __init__(self, text):
        self.text = text
        t = text.split(';')[0].strip()
        parts = t.split(None, 1)
        self.op = parts[0]
        rest = parts[1] if len(parts) > 1 else ''
        ops = []; depth = 0; cur = ''
        for ch in rest:
            if ch in '[(': depth += 1
            if ch in '])': depth -= 1
            if ch == ',' and depth == 0: ops.append(cur.strip()); cur = ''
            else: cur += ch
        if cur.strip(): ops.append(cur.strip())
        self.mods = ''
        if ops:
            last = ops[-1].split(None, 1)
            ops[-1] = last[0]
            self.mods = last[1] if len(last) > 1 else ''
        self.ops = ops
        op = self.op
        self.kind = 'other'
        W = []; R = []
        self.mf = None
        if op.startswith('v_mfma'):
            self.kind = 'mfma'
            W = regs_of(ops[0]); self.A = regs_of(ops[1]); self.B = regs_of(ops[2]); self.C = regs_of(ops[3])
            R = self.A + self.B + self.C
            self.passes = 8 if ('32x32' in op or '16x16x4_f32' in op) else 4
        elif op.startswith('v_'):
            self.kind = 'valu'
            if op.startswith('v_cmp'):
                W = regs_of(ops[0]); R = sum((regs_of(o) for o in ops[1:]), [])
                if op.startswith('v_cmpx'): W += regs_of('exec')
            elif op.startswith('v_permlane'):
                W = regs_of(ops[0]) + regs_of(ops[1]); R = list(W)
            elif op.startswith(('v_add_co', 'v_sub_co', 'v_addc_co', 'v_subb_co')):
                W = regs_of(ops[0]) + regs_of(ops[1]); R = sum((regs_of(o) for o in ops[2:]), [])
            else:
                W = regs_of(ops[0]); R = sum((regs_of(o) for o in ops[1:]), [])
                if op.startswith(('v_fmac', 'v_dot2c', 'v_writelane')) or 'dpp' in op: R += regs_of(ops[0])
        elif op.startswith('ds_'):
            self.kind = 'ds'
            if op.startswith(('ds_read', 'ds_bpermute', 'ds_permute', 'ds_swizzle')):
                W = regs_of(ops[0]); R = sum((regs_of(o) for o in ops[1:]), [])
            else:
                R = sum((regs_of(o) for o in ops), [])
        elif op.startswith(('buffer_', 'global_', 'flat_')):
            self.kind = 'vmem'
            islds = (' lds' in ' ' + self.mods) or ('_lds_' in op)
            if islds:
                R = sum((regs_of(o) for o in ops), []) + regs_of('m0'); self.kind = 'vmem'; self.lds = True
            elif '_load' in op:
                W = regs_of(ops[0]); R = sum((regs_of(o) for o in ops[1:]), [])
            elif 'atomic' in op and 'sc0' in self.mods:
                W = regs_of(ops[0]); R = sum((regs_of(o) for o in ops), [])
            else:
                R = sum((regs_of(o) for o in ops), [])
        elif op.startswith('s_'):
            self.kind = 'salu'
            if op.startswith(('s_cmp', 's_cbranch', 's_branch', 's_waitcnt', 's_barrier', 's_nop', 's_endpgm', 's_setprio', 's_sleep', 's_bitcmp')):
                R = sum((regs_of(o) for o in ops), [])
            else:
                W = regs_of(ops[0]) if ops else []; R = sum((regs_of(o) for o in ops[1:]), [])
                if 'saveexec' in op: W += regs_of('exec')
        self.W = set(W); self.R = set(R)
        self.islds = getattr(self, 'lds', False)
        self.states = 1
        if op == 's_nop': self.states = int(ops[0], 0) + 1

def need(prev, cur):
    n = 0
    pv = prev.kind; cv = cur.kind
    vW = {r for r in prev.W if r[0] in 'va'}
    sW = {r for r in prev.W if r[0] == 's'}
    if pv == 'valu':
        isdot = prev.op.startswith('v_dot')
        if cv == 'mfma' and vW & cur.R: n = max(n, 3 if isdot else 2)
        if sW:
            if cv == 'vmem' and sW & cur.R: n = max(n, 5)
            if cv == 'valu' and sW & cur.R:
                n = max(n, 4 if cur.op.startswith(('v_readlane', 'v_writelane')) else 2)
            if cv == 'valu' and cur.op.startswith('v_div_fmas'): n = max(n, 4)
            if ('s', 126) in sW:
                if cv == 'mfma': n = max(n, 4)
                if cv == 'valu' and ('dpp' in cur.op): n = max(n, 5)
                if cv == 'valu' and cur.op.startswith(('v_readlane', 'v_readfirstlane', 'v_writelane', 'v_permlane')): n = max(n, 4)
            if cv == 'salu' and sW & cur.R: n = max(n, 1)
        if cv == 'valu':
            if 'dpp' in cur.op and vW & cur.R: n = max(n, 2)
            if cur.op.startswith('v_permlane') and vW & cur.R: n = max(n, 2)
            if cur.op.startswith(('v_readlane', 'v_readfirstlane')) and vW & cur.R: n = max(n, 1)
            if prev.op.startswith(TRANS) and vW & cur.R: n = max(n, 1)
            if isdot and (vW & (cur.R | cur.W)):
                if cur.op == prev.op:
                    ab = set(regs_of(cur.ops[1]) + regs_of(cur.ops[2]))
                    if vW & ab: n = max(n, 3)
                else: n = max(n, 3)
            if 'op_sel' in prev.mods and not prev.op.startswith('v_pk') and vW & cur.R: n = max(n, 1)
        if isdot and cv in ('ds', 'vmem') and vW & cur.R: n = max(n, 3)
        if prev.op.startswith(TRANS) and cv in ('ds', 'vmem', 'mfma') and vW & cur.R: n = max(n, 2)
    if pv == 'mfma':
        p = prev.passes
        D = prev.W
        if cv == 'mfma':
            if D & set(cur.A + cur.B): n = max(n, {4: 8, 8: 12}[p])
            if D & set(cur.C):
                if set(cur.C) == D and cur.passes == p: pass
                else: n = max(n, {4: 6, 8: 10}[p])
            elif D & cur.W: n = max(n, {4: 6, 8: 10}[p])
        elif cv in ('valu', 'ds', 'vmem'):
            if D & (cur.R | cur.W): n = max(n, {4: 8, 8: 12}[p])
        if cv == 'valu' and set(prev.C) & cur.W: n = max(n, {4: 3, 8: 7}[p])
        if cv in ('ds', 'vmem') and set(prev.C) & cur.W: n = max(n, {4: 3, 8: 7}[p])
    if pv == 'salu':
        if ('s', 124) in prev.W and cur.islds: n = max(n, 1)
    if pv == 'vmem' and ('store' in prev.op) and ('x4' in prev.op or 'x3' in prev.op):
        data = set(regs_of(prev.ops[0] if prev.op.startswith('buffer') else prev.ops[1]))
        if data & cur.W: n = max(n, 2)
    if pv == 'ds' and ('write_b128' in prev.op or 'write_b96' in prev.op):
        pass
    return n

class Asm:
    def __init__(self):
        self.lines = []
        self.hist = []
        self.nops = 0
        self.nopk = lambda ins: False
    def raw(self, s):
        self.lines.append(s)
    def label(self, name, pad=True):
        self.lines.append(f"{name}:")
    def c(self, s): self.lines.append(f"    ; {s}")
    def __call__(self, text):
        for t in text.strip().split('\n'):
            t = t.strip()
            if not t or t.startswith(';'): continue
            self.emit(t)
    def expand_pk(self, ins):
        import re as _re
        op = ins.op
        n = 3 if 'fma' in op else 2
        sel = [0]*n; selhi = [1]*n
        m = _re.search(r'op_sel:\[([0-9,]+)\]', ins.mods)
        if m: sel = [int(x) for x in m.group(1).split(',')]
        m = _re.search(r'op_sel_hi:\[([0-9,]+)\]', ins.mods)
        if m: selhi = [int(x) for x in m.group(1).split(',')]
        d = regs_of(ins.ops[0]); srcs = [regs_of(o) for o in ins.ops[1:1+n]]
        name = {'v_pk_fma_f32': 'v_fma_f32', 'v_pk_mul_f32': 'v_mul_f32', 'v_pk_add_f32': 'v_add_f32'}[op]
        lo = [srcs[i][sel[i]] for i in range(n)]; hi = [srcs[i][selhi[i]] for i in range(n)]
        assert d[0] not in hi, "lo result clobbers hi source"
        f = lambda r: f"{r[0]}{r[1]}"
        self.emit(f"{name} {f(d[0])}, " + ", ".join(map(f, lo)))
        self.emit(f"{name} {f(d[1])}, " + ", ".join(map(f, hi)))
    def emit(self, text):
        ins = Ins(text)
        if ins.op.startswith('v_pk_') and ins.op.endswith('_f32') and self.nopk(ins):
            return self.expand_pk(ins)
        dist = 0; req = 0
        for p in reversed(self.hist):
            k = need(p, ins)
            if k - dist > req: req = k - dist
            dist += p.states
            if dist >= 20: break
        while req > 0:
            k = min(req, 16)
            nop = Ins(f"s_nop {k-1}")
            self.lines.append(f"    s_nop {k-1}")
            self.hist.append(nop); self.nops += 1
            req -= k
        self.lines.append("    " + text)
        self.hist.append(ins)
        if len(self.hist) > 40: self.hist = self.hist[-40:]
    def reset_hist(self): self.hist = []
    def text(self): return "\n".join(self.lines) + "\n"
```

```python
import sys
from asmlib import Asm

NAME = "parallel_sum__sliding_local_dilated__dense_activation_silu__prompt"
HEADER = open('cdna_kernels/' + NAME + '.s.ref').read().split('; Override')[0]
OPT = lambda n: ('--' + n) in sys.argv
def OPTV(n, d):
    for a in sys.argv:
        if a.startswith('--' + n + '='): return int(a.split('=')[1])
    return d
STAMP = OPT('stamp')

ST16 = 0xA00000
CSP = 0xA20000
FLG = 0xA80000
WS_USE = 0xB00000
STAMPS = 0x1000000
K = 1024
ASL = 18 * K
BQ = 54 * K; BQS = 24 * K
PAIRO = [130 * K, 134 * K, 126 * K]
AREA = [142*K, 36*K, 102*K, 118*K, 0, 52*K, 16*K, 68*K, 84*K]
LROW = 138 * K
LCS = 138 * K + 2560
LCNT = 158 * K
LDS_TOTAL = 163840
LOG2E = 0x3fb8aa3b
SPIN = 0x40000
NVGPR = 168

def vr(a, n): return f"v[{a}:{a+n-1}]" if n > 1 else f"v{a}"

class Q:
    def __init__(self, A, name, mx): self.A = A; self.q = []; self.name = name; self.mx = mx
    def issue(self, tag, sure=True):
        self.q.append((tag, sure))
        assert self.name != 'vmcnt' or len(self.q) <= 63, "vmcnt overflow"
    def wait_str(self, tags):
        tags = tags if isinstance(tags, (set, list, tuple)) else {tags}
        idx = -1
        for i, (t, s) in enumerate(self.q):
            if t in tags: idx = i
        if idx < 0: return None
        n = sum(1 for (t, s) in self.q[idx+1:] if s)
        self.q = self.q[idx+1:]
        return f"{self.name}({min(n, self.mx)})"
    def wait(self, tags):
        s = self.wait_str(tags)
        if s: self.A(f"s_waitcnt {s}")
    def drain(self): self.q = []

SETS = {'a': ['start', 'first', 'loop', 'epi', 'flag', 'poll1', 'p2loop', 'end'],
        'b': ['start', 'first', 'bar0', 'bar1', 'bar5', 'loop', 'stat', 'epi'],
        'c': ['start', 'first', 'bar0', 'bar1', 'bar2', 'bar3', 'bar4', 'bar5'],
        'd': ['start', 'flag', 'poll0', 'P0', 'poll1', 'p3', 'p9', 'p15']}
SSET = SETS['b' if OPT('sb') else 'c' if OPT('sc') else 'd' if OPT('sd') else 'a']
LSET = ['lstart', 'lfirst', 'lbar5', 'lcnt', 'lstat', 'lu11', 'lwr', 'lu17']
def _st(A, idx): A(f"{'s_memtime' if OPT('cyc') else 's_memrealtime'} s[{80+2*idx}:{81+2*idx}]\ns_waitcnt lgkmcnt(0)")
def stamp(A, name):
    if STAMP and name in SSET: _st(A, SSET.index(name))
def lstamp(A, name):
    if STAMP and name in LSET: _st(A, LSET.index(name))
def stamp_out(A, widx, base):
    A(f"s_lshl_b32 s36, s2, 8\ns_lshl_b32 s42, {widx}, 5\ns_add_u32 s36, s36, s42\ns_add_u32 s36, s36, {base}\nv_mov_b32 v6, 0")
    for i in range(8): A(f"v_mov_b32 v{24+i}, s{80+2*i}")
    A("buffer_store_dwordx4 v[24:27], v6, s[16:19], s36 offen\nbuffer_store_dwordx4 v[28:31], v6, s[16:19], s36 offen offset:16")

ONESK = 's40'
vL16, vS, vG = 1, 2, 3

def p2_sgprs(A):
    A(f"""
    s_lshl_b32 s48, s24, 2
    s_add_u32 s48, s48, s29
    s_mov_b32 s49, s27
    s_xor_b32 s50, s27, s29
    s_and_b32 s50, s50, 3
    s_lshl_b32 s53, s32, 2
    s_and_b32 s36, s50, 1
    s_lshl_b32 s56, s32, 1
    s_add_u32 s56, s56, s36
    s_xor_b32 s57, s56, 1
    s_mul_i32 s58, s56, 7
    s_mul_i32 s59, s57, 7
    s_cmp_ge_u32 s50, 2
    s_cselect_b32 s55, -1, 1
    s_cselect_b32 s36, 6, 0
    s_add_u32 s58, s58, s36
    s_add_u32 s59, s59, s36
    """)
def p2_sb(pos, dst, extra=0):
    if pos < 4:
        return (f"s_xor_b32 {dst}, s50, {pos}\ns_add_u32 {dst}, {dst}, s53", True)
    b, i = ('s58', pos - 4) if pos < 11 else ('s59', pos - 11)
    t = f"s_mul_i32 {dst}, s55, {i}\ns_add_u32 {dst}, {dst}, {b}"
    if extra: t += f"\ns_add_u32 {dst}, {dst}, {extra}"
    return (t, False)

def ldsspin(A, vaddr, vtmp, off, target, lab, pre=False):
    A("s_mov_b32 s60, 0")
    if pre: A(f"s_branch {lab}_T")
    A.label(lab)
    A(f"""
    s_sleep 1
    ds_read_b32 v{vtmp}, v{vaddr} offset:{off}
    s_add_u32 s60, s60, 1
    s_cmp_ge_u32 s60, {SPIN*4}
    s_cbranch_scc1 {lab}_OK
    """)
    if pre: A.label(f"{lab}_T")
    A(f"""
    s_waitcnt lgkmcnt(0)
    v_readfirstlane_b32 s36, v{vtmp}
    s_cmp_lt_u32 s36, {target}
    s_cbranch_scc1 {lab}
    """)
    A.label(f"{lab}_OK")

def prologue(A):
    A.raw(f".globl {NAME}_kernel\n.p2align 8\n.type {NAME}_kernel,@function\n{NAME}_kernel:")
    A(f"""
    s_cmp_ge_u32 s2, 256
    s_cbranch_scc1 L_END
    s_load_dwordx4 s[4:7], s[0:1], 0
    s_load_dwordx4 s[20:23], s[0:1], 32
    s_load_dwordx2 s[16:17], s[0:1], 64
    s_load_dwordx2 s[64:65], s[0:1], 16
    s_load_dwordx4 s[68:71], s[0:1], 48
    v_lshrrev_b32 v4, 6, v0
    v_and_b32 v0, 63, v0
    v_readfirstlane_b32 s3, v4
    s_and_b32 s24, s2, 7
    s_lshr_b32 s25, s2, 3
    s_and_b32 s36, s24, 1
    s_lshl_b32 s26, s36, 3
    s_and_b32 s27, s25, 7
    s_add_u32 s26, s26, s27
    s_lshr_b32 s37, s24, 1
    s_lshr_b32 s29, s25, 3
    """)
    if OPT('nomix'):
        A("s_lshl_b32 s28, s37, 2\ns_add_u32 s28, s28, s29\ns_and_b32 s38, s29, 1")
    else:
        A(f"""
        s_lshl_b32 s28, s37, 1
        s_and_b32 s38, s29, 1
        s_add_u32 s28, s28, s38
        s_and_b32 s39, s29, 2
        s_lshl_b32 s39, s39, 2
        s_add_u32 s28, s28, s39
        """)
    A(f"""
    s_lshl_b32 s34, s26, 7
    s_and_b32 s32, s3, 3
    s_mov_b32 s10, 0x200000
    s_mov_b32 s11, 0x20000
    s_mov_b32 s18, {0x2000000 if STAMP else WS_USE}
    s_mov_b32 s19, 0x20000
    v_lshlrev_b32 v{vL16}, 4, v0
    s_cmp_lt_u32 s3, 8
    s_cbranch_scc1 L_COMPUTE
    """)
    loader(A)
    A.label("L_COMPUTE"); A.reset_hist()
    A(f"""
    s_lshr_b32 s31, s3, 2
    s_and_b32 s35, s3, 1
    s_mov_b32 s40, 0x3f803f80
    v_and_b32 v{vS}, 15, v0
    v_lshrrev_b32 v{vG}, 4, v0
    v_bfe_u32 v47, v0, 2, 2
    v_and_b32 v48, 3, v0
    v_lshrrev_b32 v44, 1, v{vS}
    v_xor_b32 v44, v{vG}, v44
    v_lshlrev_b32 v44, 4, v44
    v_lshl_or_b32 v44, v{vS}, 7, v44
    v_lshrrev_b32 v45, 1, v47
    v_and_b32 v49, 1, v{vG}
    v_lshl_or_b32 v45, v49, 1, v45
    v_mul_u32_u24 v46, 3072, v{vG}
    v_lshl_add_u32 v46, v47, 7, v46
    v_lshl_add_u32 v46, v48, 3, v46
    v_add_u32 v46, {BQ}, v46
    s_lshl_b32 s66, s26, 4
    s_add_u32 s66, s66, s28
    s_lshl_b32 s66, s66, 7
    s_add_u32 s66, s66, {FLG}
    """)
    p2_sgprs(A)
    A("s_waitcnt lgkmcnt(0)\ns_mov_b32 s8, s4\ns_mov_b32 s9, s5")
    stamp(A, 'start')
    A("s_cmp_ge_u32 s28, 8\ns_cbranch_scc1 L_FFN")
    path(A, 'qkv')
    A.label("L_FFN"); A.reset_hist()
    A(f"""
    s_sub_u32 s37, s28, 8
    s_and_b32 s39, s37, 1
    s_cmp_ge_u32 s3, 4
    s_cbranch_scc1 L_FFN3
    """)
    path(A, 'ffn4')
    A.label("L_FFN3"); A.reset_hist()
    path(A, 'ffn3')

def path(A, kind):
    P = kind.upper()
    qkv = kind == 'qkv'
    nA = 5 if qkv else 4
    nB = 4 if kind == 'ffn4' else 3
    LQ = Q(A, 'lgkmcnt', 15)
    aA = [4, 5]; aH = [6, 7]; aB = [8] if qkv else [6, 7, 8, 9]
    CSr = 12
    SRr = 28 if not qkv else 24
    F = [40, 72]
    ACC = 104
    def fA(s, i): return F[s] + 4 * i
    def fB(s, j): return F[s] + 4 * (nA + j)
    hs = 's31' if qkv else 's35'
    A(f"""
    s_lshl_b32 s36, {hs}, 13
    v_add_u32 v{aA[0]}, s36, v44
    v_xor_b32 v{aA[1]}, 64, v{aA[0]}
    """)
    if qkv:
        A(f"""
        v_and_b32 v36, 7, v{vS}
        v_lshrrev_b32 v37, 1, v36
        v_xor_b32 v37, v{vG}, v37
        v_lshlrev_b32 v37, 4, v37
        v_lshl_or_b32 v37, v36, 7, v37
        s_mul_i32 s36, s31, {1024+64}
        s_add_u32 s36, s36, 16384
        v_xor_b32 v{aH[0]}, s36, v37
        v_xor_b32 v{aH[1]}, 64, v{aH[0]}
        v_xor_b32 v36, s32, v45
        v_lshl_add_u32 v{aB[0]}, v36, 5, v46
        s_lshl_b32 s67, s32, 6
        """)
        bsrc = [(0, 0, 512, 12288, False), (0, 1024, 512, 12288, False), (0, 2048, 512, 12288, False)]
        cbo = [0, 256, 512]
    elif kind == 'ffn4':
        A("s_lshr_b32 s36, s3, 1\ns_lshl_b32 s67, s36, 8\ns_lshl_b32 s36, s36, 10\nv_add_u32 v46, s36, v46")
        for c in range(4):
            A(f"v_xor_b32 v36, {c}, v45\nv_lshl_add_u32 v{aB[c]}, v36, 5, v46")
        bsrc = [(c, 0, 512, 12288, False) for c in range(4)]
        cbo = [0, 64, 128, 192]
    else:
        A("s_and_b32 s63, s3, 2\ns_lshr_b32 s36, s63, 1\ns_lshl_b32 s67, s63, 6")
        for c in range(2):
            A(f"v_xor_b32 v36, s63, v45\nv_xor_b32 v36, {c}, v36\nv_lshl_add_u32 v{aB[c]}, v36, 5, v46")
        A(f"""
        v_lshlrev_b32 v36, 9, v{vG}
        v_lshl_add_u32 v36, v47, 6, v36
        v_lshl_add_u32 v36, v48, 3, v36
        v_xor_b32 v37, s36, v49
        v_lshl_add_u32 v36, v37, 5, v36
        v_add_u32 v{aB[2]}, {min(PAIRO)}, v36
        s_lshl_b32 s62, s63, 5
        s_sub_u32 s62, 768, s62
        """)
        bsrc = [(0, 2048, 512, 12288, False), (1, 2048, 512, 12288, False), (2, 0, 256, 2048, True)]
        cbo = [512, 576, None]
    A(f"v_lshlrev_b32 v38, 4, v{vG}")
    if kind == 'ffn3':
        A(f"""
        v_lshl_add_u32 v39, v{vS}, 6, v38
        v_add_u32 v39, 512, v39
        v_add_u32 v38, s62, v38
        v_cmp_eq_u32 vcc, 2, v{vS}
        v_cndmask_b32 v38, v39, v38, vcc
        """)
    else:
        A(f"v_lshl_add_u32 v38, v{vS}, {8 if qkv else 6}, v38")
    m = (1 << nB) - 1
    A(f"""
    s_lshl_b32 s36, s28, 4
    s_add_u32 s36, s36, s26
    s_lshl_b32 s36, s36, 10
    s_add_u32 s41, s36, s67
    s_add_u32 s41, s41, {CSP}
    s_mov_b32 s60, {m | (m << 16)}
    s_mov_b32 s61, {m | (m << 16)}
    """)
    for r in range(4): A(f"v_mov_b32 v{SRr+r}, {ONESK}")

    def emit(item):
        if isinstance(item, tuple):
            k, text, tag = item
            A(text); LQ.issue(tag)
        elif callable(item): item()
        else: A(item)
    def reads(s, st, hf):
        sl = st % 3
        RB = []
        for j in range(nB):
            ai, imm, ts, hstride, pair = bsrc[j]
            o = (PAIRO[sl] - min(PAIRO) if pair else sl * BQS) + imm + hf * hstride
            RB.append([('L', f"ds_read_b64_tr_b16 {vr(fB(s,j),2)}, v{aB[ai]} offset:{o}", f"B{s}{j}"),
                       ('L', f"ds_read_b64_tr_b16 {vr(fB(s,j)+2,2)}, v{aB[ai]} offset:{o+ts}", f"B{s}{j}")])
        RA = [('L', f"ds_read_b128 {vr(fA(s,i),4)}, v{aA[hf]} offset:{sl*ASL+2048*i}", f"A{s}{i}") for i in range(4)]
        if qkv: RA.append(('L', f"ds_read_b128 {vr(fA(s,4),4)}, v{aH[hf]} offset:{sl*ASL}", f"A{s}4"))
        out = RB[0] + RA[:4] + RB[1] + RA[4:]
        for j in range(2, nB): out += RB[j]
        return out
    def mfmas(s):
        M = []
        if qkv:
            for i in range(4): M.append((ACC+4*i, fB(s,0), fA(s,i), {f"B{s}0", f"A{s}{i}"}))
            for i in (1, 2, 3, 4, 0):
                a = 4 if i == 0 else i - 1
                M.append((ACC+4*(4+i), fB(s,1), fA(s,a), {f"B{s}1", f"A{s}{a}"}))
            for i in range(5):
                a = 4 if i == 0 else i - 1
                M.append((ACC+4*(9+i), fA(s,a), fB(s,2), {f"B{s}2", f"A{s}{a}"}))
        else:
            for j in range(nB):
                for i in range(4):
                    M.append((ACC+4*(i*nB+j), fB(s,j), fA(s,i), {f"B{s}{j}", f"A{s}{i}"}))
        return M
    def run(M, slots, first=False):
        for m, its in zip(M, slots):
            d, a, b, deps = m
            LQ.wait(deps)
            A(f"v_mfma_f32_16x16x32_bf16 {vr(d,4)}, {vr(a,4)}, {vr(b,4)}, {'0' if first else vr(d,4)}")
            for it in its: emit(it)
    def spread(n, items, start=0, end=None):
        end = n if end is None else end
        S = [[] for _ in range(n)]
        k = len(items); span = end - start
        for x, it in enumerate(items):
            S[start + (x * span) // max(k, 1)].append(it)
        return S
    def merge(*Ss): return [sum(parts, []) for parts in zip(*Ss)]
    def cs_mfma():
        A(f"s_cmp_lg_u32 {hs}, 0\ns_cbranch_scc1 {P}_NOCS1")
        for j in range(nB):
            A(f"v_mfma_f32_16x16x32_bf16 {vr(CSr+4*j,4)}, {vr(fB(0,j),4)}, {vr(SRr,4)}, 0")
        A.label(f"{P}_NOCS1")
    def cs_store():
        A(f"s_cmp_lg_u32 {hs}, 0\ns_cbranch_scc1 {P}_NOCS2")
        for j in range(1, nB):
            A(f"v_cmp_eq_u32 vcc, {j}, v{vS}")
            for q in range(4): A(f"v_cndmask_b32 v{CSr+q}, v{CSr+q}, v{CSr+4*j+q}, vcc")
        A(f"s_mov_b64 exec, s[60:61]\nbuffer_store_dwordx4 {vr(CSr,4)}, v38, s[16:19], s41 offen sc1\ns_mov_b64 exec, -1")
        A.label(f"{P}_NOCS2")

    A("s_barrier")
    stamp(A, 'first')
    for r in reads(0, 0, 0): emit(r)
    n = len(mfmas(0))
    for st in range(8):
        run(mfmas(0), spread(n, reads(1, st, 1), 0, n - 2), first=(st == 0))
        if st == 0: cs_mfma()
        if st <= 5:
            A("s_waitcnt " + ("vmcnt(0) " if st == OPTV('pubst', 1) else "") + "lgkmcnt(0)"); LQ.drain()
            A("s_barrier")
            stamp(A, f"bar{st}")
            if st == 5 and kind == 'ffn4' and OPTV('cprio', 1): A("s_setprio 1")
        ex = [cs_store] if st == 0 else []
        rd = reads(0, st + 1, 0) if st < 7 else []
        if st == 7:
            rd = [('L', f"v_mov_b32 v36, {LCNT}\nv_mov_b32 v37, 1\ns_mov_b64 exec, 1\nds_add_u32 v36, v37 offset:4\ns_mov_b64 exec, -1", 'rel'),
                  ('L', f"ds_read_b32 v37, v36 offset:8", 'sp')]
            S = [[] for _ in range(n)]; S[0] = [rd[0]]; S[n-3] = [rd[1]]
            run(mfmas(1), S)
        else:
            run(mfmas(1), merge(spread(n, rd, 0, n - 1), spread(n, ex, 4, n)))
    if kind == 'ffn4' and OPTV('cprio', 1): A("s_setprio 0")
    stamp(A, 'loop')
    ldsspin(A, 36, 37, 8, 4, f"{P}_SSP", pre=True)
    stamp(A, 'stat')
    A(f"""
    s_lshl_b32 s36, {hs}, 10
    s_add_u32 s36, s36, {LROW + (0 if qkv else 8)}
    v_lshl_add_u32 v36, v{vS}, 4, s36
    s_add_u32 s42, s67, {LCS}
    v_lshl_add_u32 v37, v{vG}, 4, s42
    """)
    for j in range(2 if qkv else nB):
        if cbo[j] is not None: A(f"ds_read_b128 {vr(CSr+4*j,4)}, v37 offset:{cbo[j]}")
        else: A(f"v_add_u32 v38, s62, v37\nds_read_b128 {vr(CSr+4*j,4)}, v38")
    for i in range(4): A(f"ds_read_b64 {vr(SRr+2*i,2)}, v36 offset:{256*i}")
    A(f"s_lshl_b32 s41, s26, 1\ns_add_u32 s41, s41, {hs}\ns_mul_i32 s41, s41, {4*72*1024}")
    A(f"""
    v_and_b32 v10, 1, v{vG}
    v_lshrrev_b32 v11, 1, v{vG}
    v_lshlrev_b32 v39, 4, v{vS}
    v_lshl_add_u32 v39, v11, 8, v39
    """)
    if kind != 'qkv': A("v_lshl_add_u32 v11, v10, 9, v39")
    if kind != 'ffn4': A(f"v_mul_u32_u24 v10, {72*1024}, v10\nv_add_u32 v10, v10, v39")
    if qkv:
        qkv_epilogue(A, ACC, SRr, CSr)
        A("s_branch L_P2")
        return
    A(f"""
    s_mul_i32 s42, s37, 7
    s_add_u32 s42, s42, 16
    s_cmp_eq_u32 s39, 0
    s_cselect_b32 s43, 6, 0
    s_add_u32 s43, s43, s42
    s_add_u32 s42, s42, s39
    """)
    if kind == 'ffn4':
        A("s_and_b32 s36, s3, 2\ns_add_u32 s42, s42, s36")
    else:
        A("s_lshr_b32 s36, s63, 1\ns_add_u32 s42, s42, s36\ns_add_u32 s42, s42, 4")
        A("s_lshl_b32 s43, s43, 10\ns_add_u32 s43, s43, s41\ns_lshl_b32 s36, s36, 9\ns_add_u32 s43, s43, s36")
    A(f"s_lshl_b32 s42, s42, 10\ns_add_u32 s42, s42, s41\ns_mov_b32 s60, {LOG2E | 0x80000000}\ns_mov_b32 s61, {LOG2E | 0x80000000}")
    A("s_waitcnt lgkmcnt(0)")
    TM = 40; SP = 56
    for i in range(4):
        st = SRr + 2*i
        for j in range(nB):
            a = ACC + 4*(i*nB+j); t = TM + 4*j
            for q in range(4): A(f"v_fmac_f32 v{a+q}, v{CSr+4*j+q}, v{st}")
            for q in range(4): A(f"v_mul_f32 v{a+q}, v{a+q}, v{st+1}")
            for q in range(4): A(f"v_exp_f32 v{t+q}, v{a+q}")
        for j in range(nB):
            t = TM + 4*j
            for q in (0, 2): A(f"v_pk_fma_f32 {vr(t+q,2)}, {vr(t+q,2)}, s[60:61], s[60:61]")
            for q in range(4): A(f"v_rcp_f32 v{t+q}, v{t+q}")
        for j in range(nB):
            a = ACC + 4*(i*nB+j); t = TM + 4*j
            for q in (0, 2): A(f"v_pk_mul_f32 {vr(t+q,2)}, {vr(a+q,2)}, {vr(t+q,2)}")
        base = ACC + 4*(i*nB)
        for j in range(nB):
            t = TM + 4*j
            d = base + 2*j if not (kind == 'ffn3' and j == 2) else SP + 4*(i//2) + 2*(i%2)
            A(f"v_cvt_pk_bf16_f32 v{d}, v{t}, v{t+1}\nv_cvt_pk_bf16_f32 v{d+1}, v{t+2}, v{t+3}")
        for o in range(0, 8 if kind == 'ffn4' else 4, 4):
            A(f"v_permlane16_swap_b32 v{base+o}, v{base+o+2}\nv_permlane16_swap_b32 v{base+o+1}, v{base+o+3}")
        A(f"buffer_store_dwordx4 {vr(base,4)}, v11, s[16:19], s42 offen sc1")
        if kind == 'ffn4':
            A(f"buffer_store_dwordx4 {vr(base+4,4)}, v11, s[16:19], s42 offen offset:1024 sc1")
        elif i % 2 == 1:
            d = SP + 4*(i//2)
            A(f"v_permlane16_swap_b32 v{d}, v{d+2}\nv_permlane16_swap_b32 v{d+1}, v{d+3}")
            A(f"buffer_store_dwordx4 {vr(d,4)}, v10, s[16:19], s43 offen sc1\ns_add_u32 s43, s43, {2*72*1024}")
        A(f"s_add_u32 s42, s42, {72*1024}")
    if kind == 'ffn4': A("s_branch L_P2")

def qkv_epilogue(A, ACC, SR, CR):
    BC = 76; BP = 80; BP0 = 84; MC = 34; ONES = 4; TMP = 72
    QP = 88; KPr = [8, 96, 98, 100, 102]
    VS = [160, 40, 48, 56, 64]
    A(f"""
    v_and_b32 v36, 7, v{vS}
    s_lshl_b32 s36, s31, 7
    s_add_u32 s36, s36, {LROW + 2048}
    v_lshl_add_u32 v36, v36, 4, s36
    ds_read_b64 {vr(SR+8,2)}, v36
    v_lshl_add_u32 v36, v{vS}, 2, s42
    ds_read_b32 v{CR+8}, v36 offset:512
    v_and_b32 v36, 1, v{vG}
    v_lshl_add_u32 v36, v36, 6, s36
    ds_read2_b64 {vr(VS[0],4)}, v36 offset0:0 offset1:2
    ds_read2_b64 {vr(VS[0]+4,4)}, v36 offset0:4 offset1:6
    s_lshl_b32 s36, s31, 10
    s_add_u32 s36, s36, {LROW}
    v_lshl_add_u32 v36, v{vG}, 6, s36
    """)
    for i in range(4):
        A(f"ds_read2_b64 {vr(VS[i+1],4)}, v36 offset0:{32*i} offset1:{32*i+2}")
        A(f"ds_read2_b64 {vr(VS[i+1]+4,4)}, v36 offset0:{32*i+4} offset1:{32*i+6}")
    A(f"""
    v_lshlrev_b32 v36, 2, v{vG}
    v_sub_u32 v36, v{vS}, v36
    s_mov_b32 s60, 0xf149f2ca
    v_mov_b32 v37, s60
    """)
    for r in range(4):
        A(f"""
        v_subrev_u32 v38, {r}, v36
        v_cmp_gt_u32 vcc, 8, v38
        v_cndmask_b32_e64 v{BC+r}, v37, 0, vcc
        v_cmp_gt_i32 vcc, -8, v38
        v_cndmask_b32_e64 v{BP+r}, v37, 0, vcc
        v_cmp_le_i32 vcc, 0, v38
        v_cndmask_b32_e64 v{TMP+r}, 0, -1, vcc
        """)
    A(f"""
    s_mov_b32 s61, 0xffff
    v_bfi_b32 v{MC}, s61, v{TMP}, v{TMP+1}
    v_bfi_b32 v{MC+1}, s61, v{TMP+2}, v{TMP+3}
    s_cmp_eq_u32 s26, 0
    s_cselect_b32 s61, s60, 0
    """)
    for r in range(4):
        A(f"v_min_f32 v{BP0+r}, s61, v{BP+r}\nv_mov_b32 v{ONES+r}, {ONESK}")
    A("s_waitcnt lgkmcnt(0)")
    def corr_sw(a, st, cs, dst):
        for q in range(4): A(f"v_fmac_f32 v{a+q}, v{cs+q}, v{st}")
        for q in range(4): A(f"v_mul_f32 v{a+q}, v{a+q}, v{st+1}")
        A(f"v_cvt_pk_bf16_f32 v{dst}, v{a}, v{a+1}\nv_cvt_pk_bf16_f32 v{dst+1}, v{a+2}, v{a+3}")
    for i in range(4): corr_sw(ACC + 4*i, SR + 2*i, CR, QP + 2*i)
    for i in range(5): corr_sw(ACC + 4*(4+i), SR + (8 if i == 0 else 2*(i-1)), CR + 4, KPr[i])
    for b in range(4):
        A(f"v_mfma_f32_16x16x16_bf16 {vr(ACC+8*b,4)}, {vr(KPr[b+1],2)}, {vr(QP+2*b,2)}, {vr(BC,4)}")
        A(f"v_mfma_f32_16x16x16_bf16 {vr(ACC+8*b+4,4)}, {vr(KPr[b],2)}, {vr(QP+2*b,2)}, {vr(BP0 if b == 0 else BP,4)}")
    VP = SR
    for i in range(5):
        a = ACC + 4*(9+i); vs = VS[i]
        for q in range(4): A(f"v_fmac_f32 v{a+q}, v{vs+2*q}, v{CR+8}")
        for q in range(4): A(f"v_mul_f32 v{a+q}, v{a+q}, v{vs+2*q+1}")
        A(f"v_cvt_pk_bf16_f32 v{VP+2*i}, v{a}, v{a+1}\nv_cvt_pk_bf16_f32 v{VP+2*i+1}, v{a+2}, v{a+3}")
    MX = 12; TT = 16
    A(f"s_mov_b32 s60, 0x3eb8aa3b")
    for b in range(4):
        c = ACC + 8*b
        for r in range(4): A(f"v_max_f32 v{c+r}, v{c+r}, v{c+4+r}")
    for b in range(4): A(f"v_max3_f32 v{MX+b}, v{ACC+8*b}, v{ACC+8*b+1}, v{ACC+8*b+2}")
    for b in range(4): A(f"v_max_f32 v{MX+b}, v{MX+b}, v{ACC+8*b+3}")
    for sw in ("v_permlane32_swap_b32", "v_permlane16_swap_b32"):
        for b in range(4): A(f"v_mov_b32 v{TT+b}, v{MX+b}")
        for b in range(4): A(f"{sw} v{TT+b}, v{MX+b}")
        for b in range(4): A(f"v_max_f32 v{MX+b}, v{MX+b}, v{TT+b}")
    for b in range(4): A(f"v_mul_f32 v{MX+b}, s60, v{MX+b}")
    for b in range(4):
        c = ACC + 8*b
        for r in range(4): A(f"v_fma_f32 v{c+r}, v{c+r}, s60, -v{MX+b}")
        for r in range(4): A(f"v_exp_f32 v{c+r}, v{c+r}")
    for b in range(4):
        c = ACC + 8*b
        A(f"""
        v_cvt_pk_bf16_f32 v{c}, v{c}, v{c+1}
        v_cvt_pk_bf16_f32 v{c+1}, v{c+2}, v{c+3}
        v_bfi_b32 v{c+4}, v{MC}, 0, v{c}
        v_bfi_b32 v{c+5}, v{MC+1}, 0, v{c+1}
        v_and_b32 v{c+6}, v{MC}, v{c}
        v_and_b32 v{c+7}, v{MC+1}, v{c+1}
        """)
    OD = 136
    for b in range(4):
        c = ACC + 8*b
        A(f"v_mfma_f32_16x16x32_bf16 {vr(OD+8*b,4)}, {vr(VP+2*b,4)}, {vr(c+4,4)}, 0")
        A(f"v_mfma_f32_16x16x32_bf16 {vr(OD+8*b+4,4)}, {vr(ONES,4)}, {vr(c+4,4)}, 0")
    A(f"""
    s_lshl_b32 s42, s28, 1
    s_lshr_b32 s43, s32, 1
    s_add_u32 s42, s42, s43
    s_lshl_b32 s42, s42, 10
    s_add_u32 s42, s42, s41
    s_lshl_b32 s43, s35, 9
    s_add_u32 s42, s42, s43
    """)
    for b in range(4): A(f"v_rcp_f32 v{OD+8*b+4}, v{OD+8*b+4}")
    PK = ACC
    for b in range(4):
        o = OD + 8*b
        for q in range(4): A(f"v_mul_f32 v{o+q}, v{o+q}, v{o+4}")
        A(f"v_cvt_pk_bf16_f32 v{PK+2*b}, v{o}, v{o+1}\nv_cvt_pk_bf16_f32 v{PK+2*b+1}, v{o+2}, v{o+3}")
        if b % 2 == 1:
            d = PK + 2*(b-1)
            A(f"v_permlane16_swap_b32 v{d}, v{d+2}\nv_permlane16_swap_b32 v{d+1}, v{d+3}")
            A(f"buffer_store_dwordx4 {vr(d,4)}, v10, s[16:19], s42 offen sc1\ns_add_u32 s42, s42, {2*72*1024}")

NRING = 10
def phase2(A):
    A.label("L_P2"); A.reset_hist()
    A("s_nop 1")
    stamp(A, 'epi')
    VQ = Q(A, 'vmcnt', 63); LQ = Q(A, 'lgkmcnt', 15)
    RA = 4; vAo = [16, 17]; vOut = 18; XR = 20; ACC = 24; BF = [56, 72]; AF = 88
    vF = 0
    A(f"""
    v_bfe_u32 v24, v0, 2, 3
    v_lshrrev_b32 v25, 1, v24
    v_lshrrev_b32 v26, 5, v0
    v_lshlrev_b32 v26, 10, v26
    v_lshl_add_u32 v26, v24, 7, v26
    v_and_b32 v27, 3, v0
    v_lshl_add_u32 v26, v27, 3, v26
    s_lshl_b32 s36, s32, 12
    v_add_u32 v26, s36, v26
    """)
    for c in range(4):
        A(f"""
        s_add_u32 s36, s32, {c}
        s_and_b32 s36, s36, 3
        v_xor_b32 v27, s36, v25
        v_lshl_add_u32 v{RA+c}, v27, 5, v26
        v_add_u32 v{RA+4+c}, 0x10000, v{RA+c}
        v_add_u32 v{RA+8+c}, 0x20000, v{RA+c}
        """)
    A(f"""
    s_lshl_b32 s36, s48, 2
    s_lshl_b32 s42, s31, 1
    s_add_u32 s36, s36, s42
    s_mul_i32 s36, s36, {72*1024}
    v_add_u32 v{vAo[0]}, s36, v{vL16}
    v_add_u32 v{vAo[1]}, {72*1024}, v{vAo[0]}
    s_lshr_b32 s41, s48, 1
    s_lshl_b32 s36, s41, 7
    s_lshl_b32 s42, s31, 6
    s_add_u32 s36, s36, s42
    s_and_b32 s42, s48, 1
    s_add_u32 s36, s36, s42
    s_lshl_b32 s36, s36, 10
    s_lshl_b32 s42, s49, 7
    s_add_u32 s36, s36, s42
    s_lshl_b32 s42, s32, 5
    s_add_u32 s36, s36, s42
    v_lshlrev_b32 v{vOut}, 11, v{vS}
    v_lshl_add_u32 v{vOut}, v{vG}, 3, v{vOut}
    v_add_u32 v{vOut}, s36, v{vOut}
    v_add_u32 v{vOut+1}, 0x8000, v{vOut}
    s_lshl_b32 s41, s41, 11
    s_add_u32 s41, s41, {FLG}
    v_lshlrev_b32 v{vF}, 7, v{vS}
    s_lshl_b32 s42, s32, 1
    s_lshl_b32 s42, 3, s42
    s_add_u32 s36, s56, 8
    s_lshl_b32 s43, 1, s36
    s_add_u32 s36, s57, 8
    s_lshl_b32 s44, 1, s36
    v_mov_b32 v24, {LCNT}
    v_mov_b32 v25, 1
    v_mov_b32 v26, 0
    s_mov_b64 exec, 1
    s_waitcnt vmcnt(0)
    ds_add_rtn_u32 v27, v24, v25
    s_waitcnt lgkmcnt(0)
    v_readfirstlane_b32 s36, v27
    s_cmp_lg_u32 s36, 7
    s_cbranch_scc1 P2_NOFLAG
    buffer_store_dword v25, v26, s[16:19], s66 offen sc1
    """)
    A.label("P2_NOFLAG")
    A("s_mov_b64 exec, -1")
    stamp(A, 'flag')
    A("s_mov_b32 s45, 0")
    npoll = [0]
    def poll(mask):
        npoll[0] += 1; L = f"P2_POLL{npoll[0]}"
        A(f"""
        s_and_b32 s36, s45, {mask}
        s_cmp_eq_u32 s36, {mask}
        s_cbranch_scc1 {L}_OK
        s_mov_b32 s60, 0
        """)
        A.label(L)
        A(f"""
        buffer_load_dword v2, v{vF}, s[16:19], s41 offen sc1
        s_add_u32 s60, s60, 1
        s_cmp_ge_u32 s60, {SPIN}
        s_cbranch_scc1 {L}_OK
        s_waitcnt vmcnt(0)
        v_cmp_eq_u32 vcc, 1, v2
        s_nop 0
        s_mov_b32 s45, vcc_lo
        s_and_b32 s36, s45, {mask}
        s_cmp_eq_u32 s36, {mask}
        s_cbranch_scc0 {L}
        """)
        A.label(f"{L}_OK")
    def apoll_issue():
        A(f"buffer_load_dword v3, v{vF}, s[16:19], s41 offen sc1"); VQ.issue('ap')
    def apoll_take():
        VQ.wait('ap')
        A("v_cmp_eq_u32 vcc, 1, v3\ns_nop 0\ns_or_b32 s45, s45, vcc_lo")
    def areg(pos): return AF + 8 * (pos % NRING)
    def aload(pos):
        t, wo = p2_sb(pos, 's61', 16)
        t += f"""
        s_lshl_b32 s61, s61, 10
        buffer_load_dwordx4 {vr(areg(pos),4)}, v{vAo[0]}, s[16:19], s61 offen sc1"""
        return [('V', t, f"a{pos}"), ('V', f"buffer_load_dwordx4 {vr(areg(pos)+4,4)}, v{vAo[1]}, s[16:19], s61 offen sc1", f"a{pos}")]
    def emit(item):
        if isinstance(item, tuple):
            k, text, tag = item; A(text); (VQ if k == 'V' else LQ).issue(tag)
        elif callable(item): item()
        else: A(item)
    def breads(pos):
        s = pos & 1; area = AREA[pos % 9]
        R = []
        for c in range(4):
            for t in range(2):
                st, oo = (area + t * 2048) >> 16, (area + t * 2048) & 0xffff
                R.append(('L', f"ds_read_b64_tr_b16 {vr(BF[s]+4*c+2*t,2)}, v{RA+4*st+c} offset:{oo}", f"b{pos}{c}"))
        return R
    def step(pos, extra):
        s = pos & 1
        k = 0
        for c in range(4):
            for b in range(2):
                LQ.wait(f"b{pos}{c}")
                if c == 0: VQ.wait(f"a{pos}")
                a = ACC + 4*(c*2+b)
                A(f"v_mfma_f32_16x16x32_bf16 {vr(a,4)}, {vr(BF[s]+4*c,4)}, {vr(areg(pos)+4*b,4)}, {'0' if pos == 0 else vr(a,4)}")
                tgt = (len(extra) * (c*2+b+1) + 7) // 8
                while k < tgt: emit(extra[k]); k += 1
    poll('s42')
    stamp(A, 'poll0')
    for p in range(4):
        for g in aload(p): emit(g)
    apoll_issue()
    A("s_barrier")
    stamp(A, 'P0')
    for r in breads(0): emit(r)
    NPRE = OPTV('npre', 0)
    issued = 4
    for pos in range(18):
        ex = []
        if pos == NPRE:
            apoll_take(); poll('s43'); stamp(A, 'poll1')
            while issued < min(pos + NRING, 11):
                for g in aload(issued): emit(g)
                issued += 1
        nxt = breads(pos + 1) if pos < 17 else []
        if pos > NPRE:
            while issued < min(pos + NRING, 18):
                if issued == 11: ex.append(lambda: poll('s44'))
                ex += aload(issued); issued += 1
        if pos == 12:
            ex += [('V', f"buffer_load_dwordx2 {vr(XR,2)}, v{vOut}, s[8:11], 0 offen", 'x'), ('V', f"buffer_load_dwordx2 {vr(XR+2,2)}, v{vOut+1}, s[8:11], 0 offen", 'x')]
        stamp(A, f"p{pos}")
        step(pos, nxt + ex)
        if (pos + 1) % 3 == 0 and pos + 1 <= 12:
            A("s_barrier")
    stamp(A, 'p2loop')
    for c in (1, 2, 3):
        A(f"""
        s_add_u32 s36, s32, {c}
        s_and_b32 s36, s36, 3
        s_lshl_b32 s36, s36, 1
        s_add_u32 s36, s36, s31
        s_lshl_b32 s36, s36, 11
        s_add_u32 s36, s36, {AREA[c-1]}
        v_add_u32 v4, s36, v{vL16}
        ds_write_b128 v4, {vr(ACC+8*c,4)}
        ds_write_b128 v4, {vr(ACC+8*c+4,4)} offset:1024
        """)
    A(f"""
    s_lshl_b32 s36, s32, 1
    s_add_u32 s36, s36, s31
    s_lshl_b32 s36, s36, 11
    v_add_u32 v4, s36, v{vL16}
    v_add_u32 v5, {AREA[0]}, v4
    v_add_u32 v6, {AREA[1]}, v4
    v_add_u32 v7, {AREA[2]}, v4
    s_mov_b32 s8, s68
    s_mov_b32 s9, s69
    s_waitcnt vmcnt(0)
    """)
    for b in range(2):
        for q in range(2):
            x = XR + 2*b + q; a = ACC + 4*b + 2*q
            A(f"v_lshlrev_b32 v8, 16, v{x}\nv_and_b32 v9, 0xffff0000, v{x}\nv_add_f32 v{a}, v{a}, v8\nv_add_f32 v{a+1}, v{a+1}, v9")
    A("s_waitcnt lgkmcnt(0)\ns_barrier")
    for c in (1, 2, 3):
        A(f"ds_read_b128 {vr(BF[0]+8*(c-1),4)}, v{4+c}\nds_read_b128 {vr(BF[0]+8*(c-1)+4,4)}, v{4+c} offset:1024")
    A("s_waitcnt lgkmcnt(0)")
    for b in range(2):
        for q in range(2):
            a = ACC + 4*b + 2*q; r = BF[0] + 4*b + 2*q
            A(f"""
            v_pk_add_f32 {vr(r,2)}, {vr(r,2)}, {vr(r+8,2)}
            v_pk_add_f32 {vr(a,2)}, {vr(a,2)}, {vr(r+16,2)}
            v_pk_add_f32 {vr(a,2)}, {vr(a,2)}, {vr(r,2)}
            v_cvt_pk_bf16_f32 v{XR+2*b+q}, v{a}, v{a+1}
            """)
        A(f"buffer_store_dwordx2 {vr(XR+2*b,2)}, v{vOut+b}, s[8:11], 0 offen")
    if STAMP:
        A("s_waitcnt vmcnt(0)")
        stamp(A, 'end')
        stamp_out(A, 's3', STAMPS)
    A.label("L_END")
    A("s_endpgm")

def loader(A):
    VQ = Q(A, 'vmcnt', 63)
    vA0, vA1, vBe, vBo, vX = 4, 5, 6, 7, 8
    vB2 = [10, 11, 12, 13]
    STG = 24
    RW = STG + 128
    if OPTV('lprio', 3): A(f"s_setprio {OPTV('lprio', 3)}")
    A(f"""
    s_and_b32 s30, s27, 3
    s_lshl_b32 s30, s30, 1
    s_add_u32 s30, s30, s36
    s_add_u32 s30, s30, s37
    s_lshl_b32 s38, s38, 2
    s_add_u32 s30, s30, s38
    s_and_b32 s30, s30, 7
    s_lshr_b32 s33, s27, 2
    v_lshrrev_b32 v14, 3, v0
    v_and_b32 v15, 7, v0
    v_lshrrev_b32 v16, 1, v14
    v_xor_b32 v17, v15, v16
    v_lshlrev_b32 v17, 4, v17
    s_lshl_b32 s41, s33, 6
    v_xor_b32 v17, s41, v17
    s_and_b32 s36, s32, 1
    s_lshl_b32 s36, s36, 6
    s_add_u32 s36, s36, s34
    s_lshr_b32 s43, s32, 1
    s_add_u32 s36, s36, s43
    s_lshl_b32 s36, s36, 10
    v_lshlrev_b32 v18, 11, v14
    v_add3_u32 v{vA0}, v18, v17, s36
    v_xor_b32 v{vA1}, 64, v{vA0}
    v_add_u32 v{vA1}, 0x4000, v{vA1}
    v_bfe_u32 v19, v0, 1, 2
    v_and_b32 v20, 1, v16
    v_xor_b32 v19, v19, v20
    v_lshlrev_b32 v19, 5, v19
    v_and_b32 v20, 1, v0
    v_lshl_or_b32 v19, v20, 4, v19
    s_lshl_b32 s36, s33, 1
    s_xor_b32 s42, s36, s32
    s_lshl_b32 s42, s42, 4
    v_add_u32 v21, s42, v14
    s_lshl_b32 s44, s32, 12
    s_mul_i32 s45, s32, 6144
    s_add_u32 s45, s45, {BQ}
    s_mov_b32 s15, 0x20000
    s_mov_b32 s99, 0x20000
    s_sub_u32 s37, s28, 8
    s_mul_i32 s38, s37, 448
    s_and_b32 s39, s37, 1
    s_lshl_b32 s46, s39, 6
    s_add_u32 s46, s46, s38
    s_cmp_eq_u32 s39, 0
    s_cselect_b32 s47, 384, 0
    s_add_u32 s47, s47, s38
    s_lshl_b32 s36, s28, 7
    s_cmp_lt_u32 s28, 8
    s_cselect_b32 s46, s36, s46
    s_mov_b32 s51, 3584
    s_cselect_b32 s51, 3072, s51
    s_mov_b32 s52, 128
    s_cselect_b32 s52, 1024, s52
    s_cselect_b32 s31, 0, -1
    s_lshl_b32 s14, s51, 9
    s_lshl_b32 s35, s51, 6
    v_mul_lo_u32 v{vBe}, v21, s51
    v_add3_u32 v{vBe}, v{vBe}, v19, s46
    v_xor_b32 v{vBo}, 64, v{vBe}
    s_lshl_b32 s36, s51, 3
    v_add_u32 v{vBo}, s36, v{vBo}
    s_lshl_b32 s36, s32, 2
    v_add_u32 v20, s36, v14
    v_lshrrev_b32 v22, 1, v20
    v_xor_b32 v22, v15, v22
    v_and_b32 v22, 7, v22
    v_lshlrev_b32 v22, 4, v22
    v_xor_b32 v22, s41, v22
    v_and_b32 v20, 7, v20
    v_lshl_add_u32 v22, v20, 11, v22
    s_add_u32 s36, s43, s34
    s_sub_u32 s36, s36, 16
    s_lshl_b32 s36, s36, 10
    v_add_u32 v{vX}, s36, v22
    v_lshrrev_b32 v20, 2, v0
    v_add_u32 v20, s42, v20
    v_mul_u32_u24 v20, 3584, v20
    v_bfe_u32 v22, v0, 1, 1
    v_lshrrev_b32 v23, 5, v0
    v_xor_b32 v22, v22, v23
    v_lshlrev_b32 v22, 5, v22
    v_and_b32 v21, 1, v0
    v_lshl_or_b32 v22, v21, 4, v22
    v_add3_u32 v20, v20, v22, s47
    v_bfi_b32 v{vX}, s31, v20, v{vX}
    s_lshl_b32 s67, s28, 3
    s_lshl_b32 s36, s32, 1
    s_add_u32 s67, s67, s36
    s_and_b32 s66, s67, 63
    s_lshl_b32 s66, s66, 1
    s_lshr_b32 s36, s67, 6
    s_add_u32 s66, s66, s36
    s_add_u32 s66, s66, s34
    s_lshl_b32 s66, s66, 10
    s_add_u32 s67, s67, s34
    v_and_b32 v22, 0x1f0, v{vL16}
    v_lshl_add_u32 v22, v23, 11, v22
    s_lshl_b32 s36, s32, 9
    s_add_u32 s36, s36, 16384
    s_lshl_b32 s38, s32, 10
    s_add_u32 s39, s36, {ASL}
    s_add_u32 s40, s36, {2*ASL}
    s_add_u32 s37, s38, {PAIRO[0]}
    s_add_u32 s41, s38, {PAIRO[1]}
    s_add_u32 s42, s38, {PAIRO[2]}
    s_cmp_lt_u32 s28, 8
    s_cselect_b32 s37, s36, s37
    s_cselect_b32 s38, s39, s41
    s_cselect_b32 s39, s40, s42
    s_cselect_b32 s98, s10, s14
    s_mov_b32 s40, 128
    s_cselect_b32 s40, s40, s35
    s_waitcnt lgkmcnt(0)
    s_mov_b32 s8, s4
    s_mov_b32 s9, s5
    s_cselect_b32 s12, s6, s20
    s_cselect_b32 s13, s7, s21
    s_cselect_b32 s96, s4, s20
    s_cselect_b32 s97, s5, s21
    """)
    lstamp(A, 'lstart')
    def dma(st):
        sl = st % 3; t = f"st{st}"
        A(f"""
        s_lshl_b32 s61, s30, 7
        s_add_u32 m0, s44, {sl*ASL}
        s_mul_i32 s62, s30, s35
        buffer_load_dwordx4 v{vA0}, s[8:11], s61 offen lds
        s_add_u32 m0, s45, {sl*BQS}
        s_add_u32 s63, s61, 0x8000
        buffer_load_dwordx4 v{vBe}, s[12:15], s62 offen lds
        s_add_u32 m0, s44, {sl*ASL+1024}
        s_add_u32 s41, s62, s52
        buffer_load_dwordx4 v{vA1}, s[8:11], s61 offen lds
        s_add_u32 m0, s45, {sl*BQS+1024}
        s_add_u32 s42, s41, s52
        buffer_load_dwordx4 v{vBe}, s[12:15], s41 offen lds
        s_add_u32 m0, s44, {sl*ASL+2048}
        s_mul_i32 s43, s30, s40
        buffer_load_dwordx4 v{vA0}, s[8:11], s63 offen lds
        s_add_u32 m0, s45, {sl*BQS+2048}
        s_add_u32 s30, s30, 1
        buffer_load_dwordx4 v{vBe}, s[12:15], s42 offen lds
        s_add_u32 m0, s44, {sl*ASL+3072}
        s_and_b32 s30, s30, 7
        buffer_load_dwordx4 v{vA1}, s[8:11], s63 offen lds
        s_add_u32 m0, s45, {sl*BQS+3072}
        s_nop 0
        buffer_load_dwordx4 v{vBo}, s[12:15], s62 offen lds
        s_add_u32 m0, s45, {sl*BQS+4096}
        s_nop 0
        buffer_load_dwordx4 v{vBo}, s[12:15], s41 offen lds
        s_add_u32 m0, s45, {sl*BQS+5120}
        s_nop 0
        buffer_load_dwordx4 v{vBo}, s[12:15], s42 offen lds
        s_mov_b32 m0, s{37+sl}
        s_mov_b32 exec_hi, s31
        buffer_load_dwordx4 v{vX}, s[96:99], s43 offen lds
        s_mov_b32 exec_hi, -1
        """)
        for _ in range(11): VQ.issue(t)
    dma(0)
    A(f"""
    buffer_load_dwordx4 {vr(RW,4)}, v22, s[8:11], s66 offen
    buffer_load_dwordx4 {vr(RW+4,4)}, v22, s[8:11], s66 offen offset:512
    """)
    VQ.issue('row'); VQ.issue('row')
    p2_sgprs(A)
    A(f"""
    s_mov_b32 s72, s64
    s_mov_b32 s73, s65
    s_mov_b32 s74, {512*1024}
    s_mov_b32 s75, 0x20000
    s_mov_b32 s76, s22
    s_mov_b32 s77, s23
    s_mov_b32 s78, {1792*1024}
    s_mov_b32 s79, 0x20000
    v_bfe_u32 v20, v0, 1, 2
    v_lshrrev_b32 v22, 4, v0
    v_xor_b32 v20, v20, v22
    v_lshlrev_b32 v20, 5, v20
    v_lshl_or_b32 v20, v21, 4, v20
    v_and_b32 v22, 3, v14
    v_lshl_or_b32 v20, v22, 10, v20
    v_lshl_or_b32 v20, v23, 13, v20
    s_lshl_b32 s36, s49, 7
    v_add_u32 v{vB2[0]}, s36, v20
    v_add_u32 v{vB2[1]}, {16*1024-1024}, v{vB2[0]}
    v_add_u32 v{vB2[2]}, {4*1024-2048}, v{vB2[0]}
    v_add_u32 v{vB2[3]}, {20*1024-3072}, v{vB2[0]}
    v_add_u32 v9, s44, v{vL16}
    v_mov_b32 v21, {LCNT}
    v_mov_b32 v16, 0
    v_mov_b32 v17, 0
    v_mov_b32 v18, 0
    v_mov_b32 v19, 0
    ds_write_b128 v21, v[16:19]
    """)
    dma(1)
    A(f"""
    s_lshl_b32 s66, s26, 4
    s_add_u32 s66, s66, s28
    s_lshl_b32 s66, s66, 7
    s_add_u32 s66, s66, {FLG}
    s_lshl_b32 s36, s32, 2
    s_add_u32 s36, s36, s66
    s_mov_b64 exec, 1
    buffer_store_dword v16, v16, s[16:19], s36 offen sc1
    s_mov_b64 exec, -1
    """)
    VQ.issue('pub')
    VQ.wait('st0')
    lstamp(A, 'lfirst')
    A("s_waitcnt lgkmcnt(0)\ns_barrier")
    def rowstats():
        VQ.wait('row')
        A("s_mov_b32 s36, 0x3f803f80")
        for q in range(8):
            A(f"v_dot2c_f32_bf16 v16, s36, v{RW+q}\nv_dot2c_f32_bf16 v17, v{RW+q}, v{RW+q}")
        for d in ("quad_perm:[1,0,3,2]", "quad_perm:[2,3,0,1]", "row_half_mirror", "row_mirror"):
            for x in (16, 17): A(f"v_add_f32_dpp v{x}, v{x}, v{x} {d} row_mask:0xf bank_mask:0xf")
        A(f"""
        v_mov_b32 v18, v16
        v_mov_b32 v19, v17
        v_permlane16_swap_b32 v18, v16
        v_permlane16_swap_b32 v19, v17
        v_add_f32 v16, v16, v18
        v_add_f32 v17, v17, v19
        v_mul_f32 v16, 0x3b000000, v16
        v_mul_f32 v17, 0x3b000000, v17
        v_fma_f32 v17, -v16, v16, v17
        v_max_f32 v17, 0, v17
        v_cvt_pk_bf16_f32 v16, v16, v17
        v_and_b32 v17, 0xffff0000, v16
        v_lshlrev_b32 v16, 16, v16
        v_add_f32 v17, 0x3727c5ac, v17
        v_cvt_pk_bf16_f32 v17, v17, v17
        v_and_b32 v17, 0xffff0000, v17
        v_sqrt_f32 v17, v17
        v_cvt_pk_bf16_f32 v17, v17, v17
        v_and_b32 v17, 0xffff0000, v17
        v_rcp_f32 v17, v17
        v_sub_f32 v16, 0, v16
        v_mov_b32 v18, v16
        v_mul_f32 v19, {LOG2E | 0x80000000}, v17
        s_lshl_b32 s36, s67, 4
        s_add_u32 s36, s36, {ST16}
        v_lshlrev_b32 v22, 4, v23
        s_mov_b32 exec_lo, 1
        s_mov_b32 exec_hi, 1
        buffer_store_dwordx4 v[16:19], v22, s[16:19], s36 offen sc1
        s_mov_b64 exec, -1
        """)
        VQ.issue('pub')
    rowstats()
    dma(2)
    def sreg(pos): return STG + 16 * ((pos - 3) % 9)
    def unit(pos):
        t, wo = p2_sb(pos, 's60')
        srd = 's[72:75]' if wo else 's[76:79]'
        A(t + "\ns_lshl_b32 s60, s60, 15")
        if pos < 3:
            A(f"s_add_u32 m0, s44, {AREA[pos]}")
            for o in range(4):
                A(f"buffer_load_dwordx4 v{vB2[o]}, {srd}, s60 offen offset:{1024*o} lds"); VQ.issue('u0')
        else:
            for o in range(4):
                A(f"buffer_load_dwordx4 {vr(sreg(pos)+4*o,4)}, v{vB2[o]}, {srd}, s60 offen offset:{1024*o}"); VQ.issue(f"u{pos//3}")
    def wr(g):
        VQ.wait(f"u{g}")
        for pos in range(3*g, 3*g + 3):
            A(f"v_add_u32 v20, {AREA[pos % 9]}, v9")
            for o in range(4):
                A(f"ds_write_b128 v20, {vr(sreg(pos)+4*o,4)} offset:{1024*o}")
    pubst = OPTV('pubst', 1)
    sv = OPTV('sched', 1)
    sched = {0: ({}, [0, 1, 2], [3, 4, 5, 6, 7, 8, 9, 10, 11]),
             1: ({0: [4], 1: [5], 2: [6], 3: [7], 4: [0]}, [1, 2, 3], [8, 9, 10, 11]),
             2: ({1: [4], 2: [5], 3: [6], 4: [7, 0]}, [1, 2, 3], [8, 9, 10, 11]),
             3: ({3: [4], 4: [5, 6]}, [7, 0], [1, 2, 3, 8, 9, 10, 11]),
             }[sv]
    for st in range(6):
        tags = {f"st{st+1}"} | ({'pub'} if st == pubst else set()) | ({'st7'} if st == 5 else set())
        VQ.wait(tags)
        A("s_barrier")
        if st == pubst:
            A(f"""
            s_cmp_lg_u32 s32, 0
            s_cbranch_scc1 LD_NOSIG
            s_and_b32 s36, s2, 15
            s_lshl_b32 s36, s36, 4
            v_mov_b32 v20, s36
            v_mov_b32 v22, 1
            s_mov_b64 exec, 1
            global_atomic_add v20, v22, s[70:71] sc1
            s_mov_b64 exec, -1
            """)
            A.label("LD_NOSIG")
            VQ.issue('sig', sure=False)
        if st + 3 <= 7: dma(st + 3)
        for pos in sched[0].get(st, []): unit(pos)
    lstamp(A, 'lbar5')
    for pos in sched[1]: unit(pos)
    A(f"""
    s_mul_i32 s36, s32, 36
    v_add_u32 v4, s36, v0
    v_lshlrev_b32 v5, 4, v4
    s_sub_u32 s41, s26, 1
    s_max_i32 s41, s41, 0
    s_sub_u32 s41, s41, s26
    s_lshl_b32 s41, s41, 11
    s_add_u32 s41, s41, {56*16}
    v_and_b32 v6, 0x70, v5
    v_and_b32 v7, 8, v4
    v_lshl_add_u32 v6, v7, 7, v6
    v_add_u32 v6, s41, v6
    v_cmp_gt_u32 vcc, 128, v4
    v_cndmask_b32 v6, v6, v5, vcc
    s_lshl_b32 s41, s26, 11
    s_add_u32 s41, s41, {ST16}
    v_add_u32 v6, s41, v6
    v_add_u32 v5, {LROW}, v5
    s_lshl_b32 s42, s28, 14
    s_lshl_b32 s36, s32, 8
    s_add_u32 s42, s42, s36
    s_add_u32 s42, s42, {CSP}
    v_and_b32 v20, 0xf0, v{vL16}
    v_lshrrev_b32 v7, 4, v0
    v_lshl_add_u32 v7, v7, 12, v20
    s_add_u32 s36, s36, {LCS}
    v_add_u32 v15, s36, v20
    s_mov_b32 s60, 0
    """)
    A.label("LD_CNT")
    A(f"""
    global_load_dword v22, v20, s[70:71] sc1
    s_add_u32 s60, s60, 1
    s_cmp_ge_u32 s60, {SPIN}
    s_cbranch_scc1 LD_CNTOK
    s_waitcnt vmcnt(0)
    v_cmp_ne_u32 vcc, 16, v22
    s_nop 1
    s_cbranch_vccnz LD_CNT
    """)
    A.label("LD_CNTOK")
    lstamp(A, 'lcnt')
    C = sreg(11)
    A(f"s_mov_b32 exec_hi, 15\nbuffer_load_dwordx4 v[16:19], v6, s[16:19], 0 offen sc1\ns_mov_b32 exec_hi, -1"); VQ.issue('rs')
    for o in range(4):
        A(f"buffer_load_dwordx4 {vr(C+4*o,4)}, v7, s[16:19], s42 offen offset:{1024*o} sc1"); VQ.issue('cs')
    rest = list(sched[2])
    assert rest[-1] == 11
    for pos in rest[:OPTV('nmid', 1)]: unit(pos)
    VQ.wait('rs')
    A(f"s_mov_b32 exec_hi, 15\nds_write_b128 v5, v[16:19]\ns_mov_b32 exec_hi, -1")
    VQ.wait('cs')
    for q in range(4):
        A(f"v_add_f32 v{C+q}, v{C+q}, v{C+4+q}\nv_add_f32 v{C+8+q}, v{C+8+q}, v{C+12+q}")
    for q in range(4): A(f"v_add_f32 v{C+q}, v{C+q}, v{C+8+q}")
    for sw in ("v_permlane32_swap_b32", "v_permlane16_swap_b32"):
        for q in range(4): A(f"v_mov_b32 v{C+4+q}, v{C+q}")
        for q in range(4): A(f"{sw} v{C+4+q}, v{C+q}")
        for q in range(4): A(f"v_add_f32 v{C+q}, v{C+q}, v{C+4+q}")
    A(f"ds_write_b128 v15, {vr(C,4)}")
    A(f"v_mov_b32 v22, 1\ns_mov_b64 exec, 1\nds_add_u32 v21, v22 offset:8\ns_mov_b64 exec, -1\ns_waitcnt lgkmcnt(0)")
    lstamp(A, 'lstat')
    A("s_setprio 0")
    for pos in rest[OPTV('nmid', 1):]: unit(pos)
    lstamp(A, 'lu11')
    ldsspin(A, 21, 22, 4, 8, "LD_REL")
    wr(1); wr(2)
    VQ.wait('u0')
    A("s_waitcnt lgkmcnt(0)")
    lstamp(A, 'lwr')
    ldsspin(A, 21, 22, 0, 8, "LD_DRN")
    nb = OPTV('nbefore', 3)
    for pos in range(12, 12 + nb): unit(pos)
    A("s_barrier")
    for pos in range(12 + nb, 18): unit(pos)
    lstamp(A, 'lu17')
    for g in (3, 4, 5):
        A("s_barrier")
        wr(g)
        A("s_waitcnt lgkmcnt(0)")
    A("s_barrier")
    if STAMP: stamp_out(A, 's32', STAMPS + 0x10000)
    A("s_endpgm")

def main():
    out = sys.argv[1]
    A = Asm()
    A.nopk = lambda ins: 'op_sel' in ins.mods
    if OPT('nopk'): A.nopk = lambda ins: True
    A.raw(HEADER.rstrip())
    if STAMP: A.raw("; stamps: " + " ".join(SSET) + "\n; lstamps: " + " ".join(LSET) + ("\n; nomix" if OPT('nomix') else ""))
    A.raw(f"; @launch grid=(256,1,1) block=(768,1,1) lds={LDS_TOTAL}")
    A.raw('.amdgcn_target "amdgcn-amd-amdhsa--gfx950"\n.text')
    prologue(A)
    phase2(A)
    A.raw(f""".section .rodata,"a"
.p2align 6
.amdhsa_kernel {NAME}_kernel
  .amdhsa_next_free_vgpr {NVGPR}
  .amdhsa_next_free_sgpr 100
  .amdhsa_accum_offset {NVGPR}
  .amdhsa_group_segment_fixed_size 0
  .amdhsa_kernarg_size 72
  .amdhsa_user_sgpr_count 2
  .amdhsa_user_sgpr_kernarg_segment_ptr 1
  .amdhsa_system_sgpr_workgroup_id_x 1
.end_amdhsa_kernel""")
    open(out, "w").write(A.text())
    print("nops inserted:", A.nops)
main()
```

```python
import sys
NAME = "parallel_sum__sliding_local_dilated__dense_activation_silu__prompt"
def mk(src, outf, a, b, mult, table=0x1000000, nw=8, atable=None):
    s = open(src).read()
    l = [x for x in s.split('\n') if x.startswith('; @launch')][0]
    l2 = l.replace("; @launch", f"; @launch kernel={NAME}_kernel")
    s = s.replace(l, l2 + "\n; @launch kernel=k9_kernel grid=(1,1,1) block=(64,1,1) lds=0")
    loads = ""
    for i in range(32):
        loads += f"""    buffer_load_dword v2, v1, s[8:11], s13 offen offset:{a*4}
    buffer_load_dword v3, v1, s[8:11], s13 offen offset:{b*4}
    s_waitcnt vmcnt(0)
    v_min_u32 v4, v4, v2
    v_max_u32 v5, v5, v3
    s_add_u32 s13, s13, 2048
"""
    red = ""
    for i in range(64):
        red += f"    v_readlane_b32 s20, v4, {i}\n    v_readlane_b32 s21, v5, {i}\n    s_nop 1\n    s_min_u32 s22, s22, s20\n    s_max_u32 s23, s23, s21\n"
    body = f""".globl k9_kernel
.p2align 8
.type k9_kernel,@function
k9_kernel:
    s_cmp_ge_u32 s2, 1
    s_cbranch_scc1 K9_END
    s_load_dwordx2 s[4:5], s[0:1], 64
    v_lshlrev_b32 v1, 5, v0
    v_mov_b32 v4, -1
    v_mov_b32 v5, 0
    s_waitcnt lgkmcnt(0)
    s_mov_b32 s8, s4
    s_mov_b32 s9, s5
    s_mov_b32 s10, 0x2000000
    s_mov_b32 s11, 0x20000
    s_mov_b32 s13, {table}
{loads}
    s_mov_b32 s22, -1
    s_mov_b32 s23, 0
    s_nop 1
{red}
    s_sub_u32 s24, s23, s22
    s_min_u32 s24, s24, 10000
    s_mul_i32 s24, s24, {mult}
    s_memrealtime s[26:27]
    s_waitcnt lgkmcnt(0)
K9_SPIN:
    s_memrealtime s[28:29]
    s_waitcnt lgkmcnt(0)
    s_sub_u32 s30, s28, s26
    s_cmp_lt_u32 s30, s24
    s_cbranch_scc1 K9_SPIN
K9_END:
    s_endpgm
.section .rodata,"a"
.p2align 6
.amdhsa_kernel k9_kernel
  .amdhsa_next_free_vgpr 8
  .amdhsa_next_free_sgpr 40
  .amdhsa_accum_offset 8
  .amdhsa_group_segment_fixed_size 0
  .amdhsa_kernarg_size 72
  .amdhsa_user_sgpr_count 2
  .amdhsa_user_sgpr_kernarg_segment_ptr 1
  .amdhsa_system_sgpr_workgroup_id_x 1
.end_amdhsa_kernel
"""
    s = s.replace('.section .rodata,"a"\n', body)
    open(outf, 'w').write(s)
src = sys.argv[1]
mk(src, 'sp_base.s', 0, 7, 0)
for b in [int(x) for x in sys.argv[2:]]:
    mk(src, f'sp_{b}.s', 0, b, 10)
```

```python
import sys
from asmlib import Asm

NAME = "parallel_sum__sliding_local_dilated__dense_activation_silu__prompt"
HEADER = open('cdna_kernels/' + NAME + '.s.ref').read().split('; Override')[0]
OPT = lambda n: ('--' + n) in sys.argv
def OPTV(n, d):
    for a in sys.argv:
        if a.startswith('--' + n + '='): return int(a.split('=')[1])
    return d
STAMP = OPT('stamp')

ST16 = 0xA00000
CSP = 0xA20000
FLG = 0xA80000
WS_USE = 0xB00000
STAMPS = 0x1000000
K = 1024
ASL = 18 * K
BQ = 54 * K; BQS = 24 * K
PAIRO = [130 * K, 134 * K, 126 * K]
AREA = [142*K, 36*K, 102*K, 118*K, 0, 52*K, 16*K, 68*K, 84*K]
LROW = 138 * K
LCS = 138 * K + 2560
LSM = 158 * K + 64
LSR = LSM + 576
LCNT = 158 * K
LFULL = LCNT + 32
LSEEN = LCNT + 48
LFREE = 138 * K + 3584
LDS_TOTAL = 163840
LOG2E = 0x3fb8aa3b
SPIN = 0x40000
NVGPR = 168

def vr(a, n): return f"v[{a}:{a+n-1}]" if n > 1 else f"v{a}"

class Q:
    def __init__(self, A, name, mx): self.A = A; self.q = []; self.name = name; self.mx = mx
    def issue(self, tag, sure=True):
        self.q.append((tag, sure))
        assert self.name != 'vmcnt' or len(self.q) <= 63, "vmcnt overflow"
    def wait_str(self, tags):
        tags = tags if isinstance(tags, (set, list, tuple)) else {tags}
        idx = -1
        for i, (t, s) in enumerate(self.q):
            if t in tags: idx = i
        if idx < 0: return None
        n = sum(1 for (t, s) in self.q[idx+1:] if s)
        self.q = self.q[idx+1:]
        return f"{self.name}({min(n, self.mx)})"
    def wait(self, tags):
        s = self.wait_str(tags)
        if s: self.A(f"s_waitcnt {s}")
    def drain(self): self.q = []

SETS = {'a': ['start', 'first', 'loop', 'epi', 'flag', 'poll1', 'p2loop', 'end'],
        'b': ['start', 'first', 'bar0', 'bar1', 'bar5', 'loop', 'stat', 'epi'],
        'c': ['start', 'first', 'bar0', 'bar1', 'bar2', 'bar3', 'bar4', 'bar5'],
        'd': ['start', 'flag', 'poll0', 'poll1', 'p4', 'poll3', 'p12', 'p2loop']}
SETS['e'] = ['start', 'poll0', 'p1', 'p3', 'p6', 'p9', 'p13', 'p2loop']
SSET = SETS['e' if OPT('se') else 'b' if OPT('sb') else 'c' if OPT('sc') else 'd' if OPT('sd') else 'a']
LSET = ['lstart', 'lfirst', 'lbar5', 'lcnt', 'lstat', 'lu11', 'lwr', 'lu17']
def _st(A, idx): A(f"{'s_memtime' if OPT('cyc') else 's_memrealtime'} s[{80+2*idx}:{81+2*idx}]\ns_waitcnt lgkmcnt(0)")
def stamp(A, name):
    if STAMP and name in SSET: _st(A, SSET.index(name))
def lstamp(A, name):
    if STAMP and name in LSET: _st(A, LSET.index(name))
def stamp_out(A, widx, base):
    A(f"s_lshl_b32 s36, s2, 8\ns_lshl_b32 s42, {widx}, 5\ns_add_u32 s36, s36, s42\ns_add_u32 s36, s36, {base}\nv_mov_b32 v6, 0")
    for i in range(8): A(f"v_mov_b32 v{24+i}, s{80+2*i}")
    A("buffer_store_dwordx4 v[24:27], v6, s[16:19], s36 offen\nbuffer_store_dwordx4 v[28:31], v6, s[16:19], s36 offen offset:16")

ONESK = 's40'
vL16, vS, vG = 1, 2, 3

def p2_sgprs(A):
    A(f"""
    s_lshl_b32 s48, s24, 2
    s_add_u32 s48, s48, s29
    s_mov_b32 s49, s27
    s_and_b32 s50, s29, {OPTV('mmask', 3)}
    s_lshl_b32 s50, s50, 1
    s_xor_b32 s50, s27, s50
    s_and_b32 s50, s50, {OPTV('omask', 7)}
    s_and_b32 s54, s50, 3
    s_and_b32 s55, s50, 1
    s_lshl_b32 s53, s32, 2
    s_mul_i32 s58, s32, 14
    """)
def p2_masks(A):
    A(f"""
    s_lshr_b32 s41, s48, 1
    s_lshl_b32 s41, s41, 11
    s_add_u32 s41, s41, {FLG}
    s_and_b32 s43, s48, 1
    s_lshl_b32 s36, s32, 1
    s_lshl_b32 s43, s43, 4
    s_add_u32 s43, s43, s36
    s_lshl_b32 s42, 3, s43
    s_lshr_b32 s43, s50, 2
    s_add_u32 s43, s43, s36
    s_add_u32 s43, s43, 8
    s_xor_b32 s62, s43, 1
    s_lshl_b32 s43, 1, s43
    s_lshl_b32 s62, 1, s62
    s_add_u32 s36, s36, 24
    s_lshl_b32 s56, 3, s36
    s_or_b32 s46, s42, s43
    s_or_b32 s46, s46, s62
    s_or_b32 s46, s46, s56
    s_mov_b32 s47, 0
    """)
def p2_sb(pos, dst, extra=0):
    if pos < 4:
        return (f"s_xor_b32 {dst}, s54, {pos}\ns_add_u32 {dst}, {dst}, s53", True, True)
    if pos < 12:
        t = f"s_xor_b32 {dst}, s50, {pos-4}\ns_and_b32 s36, {dst}, 4\ns_add_u32 {dst}, {dst}, s36\ns_add_u32 {dst}, {dst}, s58"
        if extra: t += f"\ns_add_u32 {dst}, {dst}, {extra}"
        return (t, False, False)
    if pos < 16:
        t = f"s_xor_b32 {dst}, s54, {pos-12}\ns_and_b32 s36, {dst}, 2\ns_mul_i32 s36, s36, 3\ns_add_u32 {dst}, {dst}, s36\ns_add_u32 {dst}, {dst}, s58\ns_add_u32 {dst}, {dst}, {4+extra}"
        return (t, False, False)
    t = f"s_xor_b32 {dst}, s55, {pos-16}\ns_add_u32 {dst}, {dst}, s58\ns_add_u32 {dst}, {dst}, {6+extra}"
    return (t, False, True)

def ldsspin(A, vaddr, vtmp, off, target, lab, pre=False):
    A("s_mov_b32 s60, 0")
    if pre: A(f"s_branch {lab}_T")
    A.label(lab)
    A(f"""
    s_sleep 1
    ds_read_b32 v{vtmp}, v{vaddr} offset:{off}
    s_add_u32 s60, s60, 1
    s_cmp_ge_u32 s60, {SPIN*4}
    s_cbranch_scc1 {lab}_OK
    """)
    if pre: A.label(f"{lab}_T")
    A(f"""
    s_waitcnt lgkmcnt(0)
    v_readfirstlane_b32 s36, v{vtmp}
    s_cmp_lt_u32 s36, {target}
    s_cbranch_scc1 {lab}
    """)
    A.label(f"{lab}_OK")

def prologue(A):
    A.raw(f".globl {NAME}_kernel\n.p2align 8\n.type {NAME}_kernel,@function\n{NAME}_kernel:")
    A(f"""
    s_cmp_ge_u32 s2, 256
    s_cbranch_scc1 L_END
    s_load_dwordx4 s[4:7], s[0:1], 0
    s_load_dwordx4 s[20:23], s[0:1], 32
    s_load_dwordx2 s[16:17], s[0:1], 64
    s_load_dwordx2 s[64:65], s[0:1], 16
    s_load_dwordx4 s[68:71], s[0:1], 48
    v_lshrrev_b32 v4, 6, v0
    v_and_b32 v0, 63, v0
    v_readfirstlane_b32 s3, v4
    s_and_b32 s24, s2, 7
    s_lshr_b32 s25, s2, 3
    s_and_b32 s36, s24, 1
    s_lshl_b32 s26, s36, 3
    s_and_b32 s27, s25, 7
    s_add_u32 s26, s26, s27
    s_lshr_b32 s37, s24, 1
    s_lshr_b32 s29, s25, 3
    """)
    if OPT('nomix'):
        A("s_lshl_b32 s28, s37, 2\ns_add_u32 s28, s28, s29\ns_and_b32 s38, s29, 1")
    else:
        A(f"""
        s_lshl_b32 s28, s37, 1
        s_and_b32 s38, s29, 1
        s_add_u32 s28, s28, s38
        s_and_b32 s39, s29, 2
        s_lshl_b32 s39, s39, 2
        s_add_u32 s28, s28, s39
        """)
    A(f"""
    s_lshl_b32 s34, s26, 7
    s_and_b32 s32, s3, 3
    s_mov_b32 s10, 0x200000
    s_mov_b32 s11, 0x20000
    s_mov_b32 s18, {0x2000000 if STAMP else WS_USE}
    s_mov_b32 s19, 0x20000
    v_lshlrev_b32 v{vL16}, 4, v0
    s_cmp_lt_u32 s3, 8
    s_cbranch_scc1 L_COMPUTE
    """)
    loader(A)
    A.label("L_COMPUTE"); A.reset_hist()
    A(f"""
    s_lshr_b32 s31, s3, 2
    s_and_b32 s35, s3, 1
    s_mov_b32 s40, 0x3f803f80
    v_and_b32 v{vS}, 15, v0
    v_lshrrev_b32 v{vG}, 4, v0
    v_bfe_u32 v47, v0, 2, 2
    v_and_b32 v48, 3, v0
    v_lshrrev_b32 v44, 1, v{vS}
    v_xor_b32 v44, v{vG}, v44
    v_lshlrev_b32 v44, 4, v44
    v_lshl_or_b32 v44, v{vS}, 7, v44
    v_lshrrev_b32 v45, 1, v47
    v_and_b32 v49, 1, v{vG}
    v_lshl_or_b32 v45, v49, 1, v45
    v_mul_u32_u24 v46, 3072, v{vG}
    v_lshl_add_u32 v46, v47, 7, v46
    v_lshl_add_u32 v46, v48, 3, v46
    v_add_u32 v46, {BQ}, v46
    s_lshl_b32 s66, s26, 4
    s_add_u32 s66, s66, s28
    s_lshl_b32 s66, s66, 7
    s_add_u32 s66, s66, {FLG}
    """)
    p2_sgprs(A)
    A("s_waitcnt lgkmcnt(0)\ns_mov_b32 s8, s4\ns_mov_b32 s9, s5")
    stamp(A, 'start')
    A("s_cmp_ge_u32 s28, 8\ns_cbranch_scc1 L_FFN")
    path(A, 'qkv')
    A.label("L_FFN"); A.reset_hist()
    A(f"""
    s_sub_u32 s37, s28, 8
    s_and_b32 s39, s37, 1
    s_cmp_ge_u32 s3, 4
    s_cbranch_scc1 L_FFN3
    """)
    path(A, 'ffn4')
    A.label("L_FFN3"); A.reset_hist()
    path(A, 'ffn3')

def path(A, kind):
    P = kind.upper()
    qkv = kind == 'qkv'
    nA = 5 if qkv else 4
    nB = 4 if kind == 'ffn4' else 3
    LQ = Q(A, 'lgkmcnt', 15)
    aA = [4, 5]; aH = [6, 7]; aB = [8] if qkv else [6, 7, 8, 9]
    CSr = 12
    SRr = 28 if not qkv else 24
    F = [40, 72]
    ACC = 104
    def fA(s, i): return F[s] + 4 * i
    def fB(s, j): return F[s] + 4 * (nA + j)
    hs = 's31' if qkv else 's35'
    A(f"""
    s_lshl_b32 s36, {hs}, 13
    v_add_u32 v{aA[0]}, s36, v44
    v_xor_b32 v{aA[1]}, 64, v{aA[0]}
    """)
    if qkv:
        A(f"""
        v_and_b32 v36, 7, v{vS}
        v_lshrrev_b32 v37, 1, v36
        v_xor_b32 v37, v{vG}, v37
        v_lshlrev_b32 v37, 4, v37
        v_lshl_or_b32 v37, v36, 7, v37
        s_mul_i32 s36, s31, {1024+64}
        s_add_u32 s36, s36, 16384
        v_xor_b32 v{aH[0]}, s36, v37
        v_xor_b32 v{aH[1]}, 64, v{aH[0]}
        v_xor_b32 v36, s32, v45
        v_lshl_add_u32 v{aB[0]}, v36, 5, v46
        s_lshl_b32 s67, s32, 6
        """)
        bsrc = [(0, 0, 512, 12288, False), (0, 1024, 512, 12288, False), (0, 2048, 512, 12288, False)]
        cbo = [0, 256, 512]
    elif kind == 'ffn4':
        A("s_lshr_b32 s36, s3, 1\ns_lshl_b32 s67, s36, 8\ns_lshl_b32 s36, s36, 10\nv_add_u32 v46, s36, v46")
        for c in range(4):
            A(f"v_xor_b32 v36, {c}, v45\nv_lshl_add_u32 v{aB[c]}, v36, 5, v46")
        bsrc = [(c, 0, 512, 12288, False) for c in range(4)]
        cbo = [0, 64, 128, 192]
    else:
        A("s_and_b32 s63, s3, 2\ns_lshr_b32 s36, s63, 1\ns_lshl_b32 s67, s63, 6")
        for c in range(2):
            A(f"v_xor_b32 v36, s63, v45\nv_xor_b32 v36, {c}, v36\nv_lshl_add_u32 v{aB[c]}, v36, 5, v46")
        A(f"""
        v_lshlrev_b32 v36, 9, v{vG}
        v_lshl_add_u32 v36, v47, 6, v36
        v_lshl_add_u32 v36, v48, 3, v36
        v_xor_b32 v37, s36, v49
        v_lshl_add_u32 v36, v37, 5, v36
        v_add_u32 v{aB[2]}, {min(PAIRO)}, v36
        s_lshl_b32 s62, s63, 5
        s_sub_u32 s62, 768, s62
        """)
        bsrc = [(0, 2048, 512, 12288, False), (1, 2048, 512, 12288, False), (2, 0, 256, 2048, True)]
        cbo = [512, 576, None]
    A(f"v_lshlrev_b32 v38, 4, v{vG}")
    if kind == 'ffn3':
        A(f"""
        v_lshl_add_u32 v39, v{vS}, 6, v38
        v_add_u32 v39, 512, v39
        v_add_u32 v38, s62, v38
        v_cmp_eq_u32 vcc, 2, v{vS}
        v_cndmask_b32 v38, v39, v38, vcc
        """)
    else:
        A(f"v_lshl_add_u32 v38, v{vS}, {8 if qkv else 6}, v38")
    m = (1 << nB) - 1
    A(f"""
    s_lshl_b32 s36, s28, 4
    s_add_u32 s36, s36, s26
    s_lshl_b32 s36, s36, 10
    s_add_u32 s41, s36, s67
    s_add_u32 s41, s41, {CSP}
    s_mov_b32 s60, {m | (m << 16)}
    s_mov_b32 s61, {m | (m << 16)}
    """)
    for r in range(4): A(f"v_mov_b32 v{SRr+r}, {ONESK}")

    def emit(item):
        if isinstance(item, tuple):
            k, text, tag = item
            A(text); LQ.issue(tag)
        elif callable(item): item()
        else: A(item)
    def reads(s, st, hf):
        sl = st % 3
        RB = []
        for j in range(nB):
            ai, imm, ts, hstride, pair = bsrc[j]
            o = (PAIRO[sl] - min(PAIRO) if pair else sl * BQS) + imm + hf * hstride
            RB.append([('L', f"ds_read_b64_tr_b16 {vr(fB(s,j),2)}, v{aB[ai]} offset:{o}", f"B{s}{j}"),
                       ('L', f"ds_read_b64_tr_b16 {vr(fB(s,j)+2,2)}, v{aB[ai]} offset:{o+ts}", f"B{s}{j}")])
        RA = [('L', f"ds_read_b128 {vr(fA(s,i),4)}, v{aA[hf]} offset:{sl*ASL+2048*i}", f"A{s}{i}") for i in range(4)]
        if qkv: RA.append(('L', f"ds_read_b128 {vr(fA(s,4),4)}, v{aH[hf]} offset:{sl*ASL}", f"A{s}4"))
        out = RB[0] + RA[:4] + RB[1] + RA[4:]
        for j in range(2, nB): out += RB[j]
        return out
    def mfmas(s):
        M = []
        if qkv:
            for i in range(4): M.append((ACC+4*i, fB(s,0), fA(s,i), {f"B{s}0", f"A{s}{i}"}))
            for i in (1, 2, 3, 4, 0):
                a = 4 if i == 0 else i - 1
                M.append((ACC+4*(4+i), fB(s,1), fA(s,a), {f"B{s}1", f"A{s}{a}"}))
            for i in range(5):
                a = 4 if i == 0 else i - 1
                M.append((ACC+4*(9+i), fA(s,a), fB(s,2), {f"B{s}2", f"A{s}{a}"}))
        else:
            for j in range(nB):
                for i in range(4):
                    M.append((ACC+4*(i*nB+j), fB(s,j), fA(s,i), {f"B{s}{j}", f"A{s}{i}"}))
        return M
    def run(M, slots, first=False):
        for m, its in zip(M, slots):
            d, a, b, deps = m
            LQ.wait(deps)
            A(f"v_mfma_f32_16x16x32_bf16 {vr(d,4)}, {vr(a,4)}, {vr(b,4)}, {'0' if first else vr(d,4)}")
            for it in its: emit(it)
    def spread(n, items, start=0, end=None):
        end = n if end is None else end
        S = [[] for _ in range(n)]
        k = len(items); span = end - start
        for x, it in enumerate(items):
            S[start + (x * span) // max(k, 1)].append(it)
        return S
    def merge(*Ss): return [sum(parts, []) for parts in zip(*Ss)]
    def cs_mfma():
        A(f"s_cmp_lg_u32 {hs}, 0\ns_cbranch_scc1 {P}_NOCS1")
        for j in range(nB):
            A(f"v_mfma_f32_16x16x32_bf16 {vr(CSr+4*j,4)}, {vr(fB(0,j),4)}, {vr(SRr,4)}, 0")
        A.label(f"{P}_NOCS1")
    def cs_store():
        A(f"s_cmp_lg_u32 {hs}, 0\ns_cbranch_scc1 {P}_NOCS2")
        for j in range(1, nB):
            A(f"v_cmp_eq_u32 vcc, {j}, v{vS}")
            for q in range(4): A(f"v_cndmask_b32 v{CSr+q}, v{CSr+q}, v{CSr+4*j+q}, vcc")
        A(f"s_mov_b64 exec, s[60:61]\nbuffer_store_dwordx4 {vr(CSr,4)}, v38, s[16:19], s41 offen sc1\ns_mov_b64 exec, -1")
        A.label(f"{P}_NOCS2")

    epi_setup(A, kind, hs)
    A("s_barrier")
    stamp(A, 'first')
    for r in reads(0, 0, 0): emit(r)
    n = len(mfmas(0))
    for st in range(8):
        run(mfmas(0), spread(n, reads(1, st, 1), 0, n - 2), first=(st == 0))
        if st == 0: cs_mfma()
        if st <= 5:
            A("s_waitcnt " + ("vmcnt(0) " if st == OPTV('pubst', 2) else "") + "lgkmcnt(0)"); LQ.drain()
            A("s_barrier")
            stamp(A, f"bar{st}")
            if st == 5 and kind == 'ffn4' and OPTV('cprio', 1): A("s_setprio 1")
        ex = [cs_store] if st == 0 else []
        rd = reads(0, st + 1, 0) if st < 7 else []
        if st == 6:
            rd = [('L', f"v_mov_b32 v36, {LCNT}\nv_mov_b32 v37, 1\ns_mov_b64 exec, 1\nds_add_u32 v36, v37 offset:12\ns_mov_b64 exec, -1", 'rel')] + rd
        if st == 7:
            rd = [('L', f"v_mov_b32 v36, {LCNT}\nv_mov_b32 v37, 1\ns_mov_b64 exec, 1\nds_add_u32 v36, v37 offset:4\ns_mov_b64 exec, -1", 'rel'),
                  ('L', f"ds_read_b32 v37, v36 offset:8", 'sp')]
            S = [[] for _ in range(n)]; S[0] = [rd[0]]; S[n-3] = [rd[1]]
            run(mfmas(1), S)
        else:
            run(mfmas(1), merge(spread(n, rd, 0, n - 1), spread(n, ex, 4, n)))
    if kind == 'ffn4' and OPTV('cprio', 1): A("s_setprio 0")
    stamp(A, 'loop')
    ldsspin(A, 36, 37, 8, 4, f"{P}_SSP", pre=True)
    stamp(A, 'stat')
    A(f"s_mov_b32 s60, {LOG2E | 0x80000000}\ns_mov_b32 s61, {LOG2E | 0x80000000}")
    SR4 = 72
    A(f"""
    s_lshl_b32 s36, {hs}, 10
    s_add_u32 s36, s36, {LROW}
    v_lshl_add_u32 v36, v{vS}, 4, s36
    s_add_u32 s42, s67, {LCS}
    v_lshl_add_u32 v37, v{vG}, 4, s42
    """)
    A(f"ds_read_b128 {vr(SR4,4)}, v36")
    for j in range(2 if qkv else nB):
        if cbo[j] is not None: A(f"ds_read_b128 {vr(CSr+4*j,4)}, v37 offset:{cbo[j]}")
        else: A(f"v_add_u32 v38, s62, v37\nds_read_b128 {vr(CSr+4*j,4)}, v38")
    for i in range(1, 4): A(f"ds_read_b128 {vr(SR4+4*i,4)}, v36 offset:{256*i}")
    if qkv:
        qkv_epilogue(A, ACC, SR4, CSr)
        A("s_branch L_P2")
        return
    A("s_waitcnt lgkmcnt(0)")
    for i in range(4): A(f"v_pk_mul_f32 {vr(SR4+4*i+2,2)}, {vr(SR4+4*i+2,2)}, s[60:61]")
    TM = 40; SP = 56
    for i in range(4):
        st = SR4 + 4*i
        for j in range(nB):
            a = ACC + 4*(i*nB+j); t = TM + 4*j
            for q in (0, 2): A(f"v_pk_fma_f32 {vr(a+q,2)}, {vr(CSr+4*j+q,2)}, {vr(st,2)}, {vr(a+q,2)}")
            for q in (0, 2): A(f"v_pk_mul_f32 {vr(a+q,2)}, {vr(a+q,2)}, {vr(st+2,2)}")
            for q in range(4): A(f"v_exp_f32 v{t+q}, v{a+q}")
        for j in range(nB):
            t = TM + 4*j
            for q in (0, 2): A(f"v_pk_fma_f32 {vr(t+q,2)}, {vr(t+q,2)}, s[60:61], s[60:61]")
            for q in range(4): A(f"v_rcp_f32 v{t+q}, v{t+q}")
        for j in range(nB):
            a = ACC + 4*(i*nB+j); t = TM + 4*j
            for q in (0, 2): A(f"v_pk_mul_f32 {vr(t+q,2)}, {vr(a+q,2)}, {vr(t+q,2)}")
        base = ACC + 4*(i*nB)
        for j in range(nB):
            t = TM + 4*j
            d = base + 2*j if not (kind == 'ffn3' and j == 2) else SP + 4*(i//2) + 2*(i%2)
            A(f"v_cvt_pk_bf16_f32 v{d}, v{t}, v{t+1}\nv_cvt_pk_bf16_f32 v{d+1}, v{t+2}, v{t+3}")
        A(f"buffer_store_dwordx4 {vr(base,4)}, v{vL16}, s[16:19], s51 offen sc1")
        if kind == 'ffn4':
            A(f"buffer_store_dwordx4 {vr(base+4,4)}, v{vL16}, s[16:19], s51 offen offset:1024 sc1")
        elif i % 2 == 1:
            d = SP + 4*(i//2)
            A(f"v_permlane16_swap_b32 v{d}, v{d+2}\nv_permlane16_swap_b32 v{d+1}, v{d+3}")
            A(f"buffer_store_dwordx4 {vr(d,4)}, v10, s[16:19], s52 offen sc1\ns_add_u32 s52, s52, {2*72*1024}")
        A(f"s_add_u32 s51, s51, {72*1024}")
    if kind == 'ffn4': A("s_branch L_P2")

def epi_setup(A, kind, hs):
    qkv = kind == 'qkv'
    A(f"""
    s_lshl_b32 s43, s26, 1
    s_add_u32 s43, s43, {hs}
    s_mul_i32 s43, s43, {4*72*1024}
    v_and_b32 v10, 1, v{vG}
    v_lshrrev_b32 v11, 1, v{vG}
    v_lshlrev_b32 v39, 4, v{vS}
    v_lshl_add_u32 v39, v11, 8, v39
    """)
    if kind != 'ffn4': A(f"v_mul_u32_u24 v10, {72*1024}, v10\nv_add_u32 v10, v10, v39")
    if qkv:
        A(f"""
        s_lshl_b32 s51, s28, 1
        s_lshr_b32 s52, s32, 1
        s_add_u32 s51, s51, s52
        s_lshl_b32 s51, s51, 10
        s_add_u32 s51, s51, s43
        s_lshl_b32 s52, s35, 9
        s_add_u32 s51, s51, s52
        v_lshlrev_b32 v36, 2, v{vG}
        v_sub_u32 v36, v{vS}, v36
        s_mov_b32 s52, 0xf149f2ca
        v_mov_b32 v37, s52
        """)
        BC = 160; BP = 164; MC = 34; TMP = 50
        for r in range(4):
            A(f"""
            v_subrev_u32 v39, {r}, v36
            v_cmp_gt_u32 vcc, 8, v39
            v_cndmask_b32_e64 v{BC+r}, v37, 0, vcc
            v_cmp_gt_i32 vcc, -8, v39
            v_cndmask_b32_e64 v{BP+r}, v37, 0, vcc
            v_cmp_le_i32 vcc, 0, v39
            v_cndmask_b32_e64 v{TMP+r}, 0, -1, vcc
            """)
        A(f"""
        s_mov_b32 s36, 0xffff
        v_bfi_b32 v{MC}, s36, v{TMP}, v{TMP+1}
        v_bfi_b32 v{MC+1}, s36, v{TMP+2}, v{TMP+3}
        s_cmp_eq_u32 s26, 0
        s_cselect_b32 s52, s52, 0
        """)
        for r in range(4): A(f"v_min_f32 v{28+r}, s52, v{BP+r}")
    else:
        A(f"""
        s_mul_i32 s51, s37, 7
        s_add_u32 s51, s51, 16
        s_cmp_eq_u32 s39, 0
        s_cselect_b32 s52, 6, 0
        s_add_u32 s52, s52, s51
        s_add_u32 s51, s51, s39
        """)
        if kind == 'ffn4':
            A("s_and_b32 s36, s3, 2\ns_add_u32 s51, s51, s36")
        else:
            A("s_lshr_b32 s36, s63, 1\ns_add_u32 s51, s51, s36\ns_add_u32 s51, s51, 4")
            A("s_lshl_b32 s52, s52, 10\ns_add_u32 s52, s52, s43\ns_lshl_b32 s36, s36, 9\ns_add_u32 s52, s52, s36")
        A(f"s_lshl_b32 s51, s51, 10\ns_add_u32 s51, s51, s43")

def qkv_epilogue(A, ACC, SR, CR):
    BC = 160; BP = 164; BP0 = 28; MC = 34; ONES = 24
    QP = 92; KPr = [4, 6, 8, 100, 102]
    VS = [(36, 20), (40, 44), (48, 52), (56, 60), (64, 68)]
    CV = 32
    A(f"""
    v_and_b32 v4, 7, v{vS}
    s_lshl_b32 s36, s31, 7
    s_add_u32 s36, s36, {LROW + 2048}
    v_lshl_add_u32 v4, v4, 4, s36
    ds_read_b128 {vr(SR+16,4)}, v4
    v_lshl_add_u32 v5, v{vS}, 2, s42
    ds_read_b32 v{CV}, v5 offset:512
    ds_read_b32 v{CV+1}, v5 offset:512
    s_lshl_b32 s36, s31, 8
    s_add_u32 s36, s36, {LSM}
    v_lshl_add_u32 v6, v{vG}, 4, s36
    s_lshl_b32 s36, s31, 5
    s_add_u32 s36, s36, {LSM + 512}
    v_and_b32 v7, 16, v0
    v_add_u32 v7, s36, v7
    s_waitcnt lgkmcnt(3)
    """)
    def corr_sw(a, st, cs, dst):
        for q in (0, 2): A(f"v_pk_fma_f32 {vr(a+q,2)}, {vr(cs+q,2)}, {vr(st,2)}, {vr(a+q,2)}")
        for q in (0, 2): A(f"v_pk_mul_f32 {vr(a+q,2)}, {vr(a+q,2)}, {vr(st+2,2)}")
        A(f"v_cvt_pk_bf16_f32 v{dst}, v{a}, v{a+1}\nv_cvt_pk_bf16_f32 v{dst+1}, v{a+2}, v{a+3}")
    for i in range(4):
        A(f"ds_read_b128 {vr(VS[i+1][0],4)}, v6 offset:{64*i}\nds_read_b128 {vr(VS[i+1][1],4)}, v6 offset:{64*i+576}")
    A(f"ds_read_b128 {vr(VS[0][0],4)}, v7\nds_read_b128 {vr(VS[0][1],4)}, v7 offset:576")
    for i in range(4): corr_sw(ACC + 4*i, SR + 4*i, CR, QP + 2*i)
    A("s_waitcnt lgkmcnt(10)")
    for i in range(5): corr_sw(ACC + 4*(4+i), SR + (16 if i == 0 else 4*(i-1)), CR + 4, KPr[i])
    for b in range(4):
        A(f"v_mfma_f32_16x16x16_bf16 {vr(ACC+8*b,4)}, {vr(KPr[b+1],2)}, {vr(QP+2*b,2)}, {vr(BC,4)}")
        A(f"v_mfma_f32_16x16x16_bf16 {vr(ACC+8*b+4,4)}, {vr(KPr[b],2)}, {vr(QP+2*b,2)}, {vr(BP0 if b == 0 else BP,4)}")
    VP = SR
    A("s_waitcnt lgkmcnt(0)")
    for i in range(5):
        a = ACC + 4*(9+i); vm, vs = VS[i]
        for q in (0, 2): A(f"v_pk_fma_f32 {vr(a+q,2)}, {vr(vm+q,2)}, {vr(CV,2)}, {vr(a+q,2)}")
        for q in (0, 2): A(f"v_pk_mul_f32 {vr(a+q,2)}, {vr(a+q,2)}, {vr(vs+q,2)}")
        A(f"v_cvt_pk_bf16_f32 v{VP+2*i}, v{a}, v{a+1}\nv_cvt_pk_bf16_f32 v{VP+2*i+1}, v{a+2}, v{a+3}")
    MX = 12; TT = 16
    A(f"s_mov_b32 s60, 0x3eb8aa3b")
    for b in range(4):
        c = ACC + 8*b
        for r in range(4): A(f"v_max_f32 v{c+r}, v{c+r}, v{c+4+r}")
    for b in range(4): A(f"v_max3_f32 v{MX+b}, v{ACC+8*b}, v{ACC+8*b+1}, v{ACC+8*b+2}")
    for b in range(4): A(f"v_max_f32 v{MX+b}, v{MX+b}, v{ACC+8*b+3}")
    A(f"""
    v_permlane32_swap_b32 v{MX}, v{MX+1}
    v_permlane32_swap_b32 v{MX+2}, v{MX+3}
    v_max_f32 v{MX}, v{MX}, v{MX+1}
    v_max_f32 v{MX+2}, v{MX+2}, v{MX+3}
    v_permlane16_swap_b32 v{MX}, v{MX+2}
    v_max_f32 v{MX}, v{MX}, v{MX+2}
    v_mul_f32 v{MX}, s60, v{MX}
    v_mov_b32 v{MX+2}, v{MX}
    v_permlane16_swap_b32 v{MX}, v{MX+2}
    v_mov_b32 v{MX+1}, v{MX}
    v_mov_b32 v{MX+3}, v{MX+2}
    v_permlane32_swap_b32 v{MX}, v{MX+1}
    v_permlane32_swap_b32 v{MX+2}, v{MX+3}
    """)
    for b in range(4):
        c = ACC + 8*b
        for r in range(4): A(f"v_fma_f32 v{c+r}, v{c+r}, s60, -v{MX+b}")
        for r in range(4): A(f"v_exp_f32 v{c+r}, v{c+r}")
    for b in range(4):
        c = ACC + 8*b
        A(f"""
        v_cvt_pk_bf16_f32 v{c}, v{c}, v{c+1}
        v_cvt_pk_bf16_f32 v{c+1}, v{c+2}, v{c+3}
        v_bfi_b32 v{c+4}, v{MC}, 0, v{c}
        v_bfi_b32 v{c+5}, v{MC+1}, 0, v{c+1}
        v_and_b32 v{c+6}, v{MC}, v{c}
        v_and_b32 v{c+7}, v{MC+1}, v{c+1}
        """)
    OD = 136
    for b in range(4):
        c = ACC + 8*b
        A(f"v_mfma_f32_16x16x32_bf16 {vr(OD+8*b+4,4)}, {vr(ONES,4)}, {vr(c+4,4)}, 0")
        A(f"v_mfma_f32_16x16x32_bf16 {vr(OD+8*b,4)}, {vr(VP+2*b,4)}, {vr(c+4,4)}, 0")
    for b in range(4): A(f"v_rcp_f32 v{OD+8*b+4}, v{OD+8*b+4}")
    PK = ACC
    for b in range(4):
        o = OD + 8*b
        for q in range(4): A(f"v_mul_f32 v{o+q}, v{o+q}, v{o+4}")
        A(f"v_cvt_pk_bf16_f32 v{PK+2*b}, v{o}, v{o+1}\nv_cvt_pk_bf16_f32 v{PK+2*b+1}, v{o+2}, v{o+3}")
        if b % 2 == 1:
            d = PK + 2*(b-1)
            A(f"v_permlane16_swap_b32 v{d}, v{d+2}\nv_permlane16_swap_b32 v{d+1}, v{d+3}")
            A(f"buffer_store_dwordx4 {vr(d,4)}, v10, s[16:19], s51 offen sc1\ns_add_u32 s51, s51, {2*72*1024}")

NRING = OPTV('nring', 8)
NBF = OPTV('nbf', 3)
def phase2(A):
    A.label("L_P2"); A.reset_hist()
    A("s_nop 1")
    stamp(A, 'epi')
    VQ = Q(A, 'vmcnt', 63); LQ = Q(A, 'lgkmcnt', 15)
    RA = 4; vAo = [16, 17]; vOut = 18; XR = 20; ACC = 24; BF = [56 + 16*i for i in range(NBF)]; AF = 56 + 16*NBF
    assert AF + 8*NRING <= NVGPR
    vF = 0; vSy = 22; vSv = 23
    A(f"""
    v_bfe_u32 v24, v0, 2, 3
    v_lshrrev_b32 v25, 1, v24
    v_lshrrev_b32 v26, 5, v0
    v_lshlrev_b32 v26, 10, v26
    v_lshl_add_u32 v26, v24, 7, v26
    v_and_b32 v27, 3, v0
    v_lshl_add_u32 v26, v27, 3, v26
    s_lshl_b32 s36, s32, 12
    v_add_u32 v26, s36, v26
    """)
    for c in range(4):
        A(f"""
        s_add_u32 s36, s32, {c}
        s_and_b32 s36, s36, 3
        v_xor_b32 v27, s36, v25
        v_lshl_add_u32 v{RA+c}, v27, 5, v26
        v_add_u32 v{RA+4+c}, 0x10000, v{RA+c}
        v_add_u32 v{RA+8+c}, 0x20000, v{RA+c}
        """)
    A(f"""
    s_lshl_b32 s36, s48, 2
    s_lshl_b32 s42, s31, 1
    s_add_u32 s36, s36, s42
    s_mul_i32 s36, s36, {72*1024}
    v_add_u32 v{vAo[0]}, s36, v{vL16}
    v_add_u32 v{vAo[1]}, {72*1024}, v{vAo[0]}
    s_lshr_b32 s41, s48, 1
    s_lshl_b32 s36, s41, 7
    s_lshl_b32 s42, s31, 6
    s_add_u32 s36, s36, s42
    s_and_b32 s43, s48, 1
    s_add_u32 s36, s36, s43
    s_lshl_b32 s36, s36, 10
    s_lshl_b32 s42, s49, 7
    s_add_u32 s36, s36, s42
    s_lshl_b32 s42, s32, 5
    s_add_u32 s36, s36, s42
    v_lshlrev_b32 v{vOut}, 11, v{vS}
    v_lshl_add_u32 v{vOut}, v{vG}, 3, v{vOut}
    v_add_u32 v{vOut}, s36, v{vOut}
    v_add_u32 v{vOut+1}, 0x8000, v{vOut}
    s_mul_i32 s36, s31, 20
    s_add_u32 s36, s36, {LCNT}
    v_mov_b32 v24, s36
    v_mov_b32 v28, {LCNT}
    v_mov_b32 v25, 1
    s_lshl_b32 s36, s31, 2
    v_mov_b32 v26, s36
    s_lshl_b32 s57, s32, 3
    s_add_u32 s57, s57, s36
    s_add_u32 s57, s57, {LFREE}
    v_mov_b32 v20, s57
    s_lshl_b32 s36, s32, 2
    s_add_u32 s36, s36, {LFULL}
    v_mov_b32 v{vSy}, s36
    v_mov_b32 v21, 1
    s_mov_b64 exec, 1
    s_waitcnt vmcnt(0)
    ds_add_rtn_u32 v27, v24, v25
    ds_add_u32 v28, v25 offset:16
    s_waitcnt lgkmcnt(0)
    v_readfirstlane_b32 s36, v27
    s_cmp_lg_u32 s36, 3
    s_cbranch_scc1 P2_NOFLAG
    buffer_store_dword v25, v26, s[16:19], s66 offen sc1
    """)
    A.label("P2_NOFLAG")
    A("s_mov_b64 exec, -1")
    stamp(A, 'flag')
    p2_masks(A)
    def chk(lab, tag, vt, off, test):
        LQ.wait(tag)
        A(f"v_readfirstlane_b32 s36, v{vt}\n{test}\ns_cbranch_scc0 {lab}_OK\ns_mov_b32 s60, 0")
        A.label(lab)
        A(f"""
        s_sleep 1
        ds_read_b32 v{vt}, v{vSy} offset:{off}
        s_add_u32 s60, s60, 1
        s_cmp_ge_u32 s60, {SPIN*4}
        s_cbranch_scc1 {lab}_OK
        s_waitcnt lgkmcnt(0)
        v_readfirstlane_b32 s36, v{vt}
        {test}
        s_cbranch_scc1 {lab}
        """)
        A.label(f"{lab}_OK")
    def seen_pre(): A(f"ds_read_b32 v3, v{vSy} offset:16"); LQ.issue('se')
    def gate_chk(mask, lab): chk(lab, 'se', 3, 16, f"s_and_b32 s36, s36, {mask}\ns_cmp_lg_u32 s36, {mask}")
    def areg(pos): return AF + 8 * (pos % NRING)
    def aload(pos):
        t, wo, nat = p2_sb(pos, 's61', 16)
        t += f"""
        s_lshl_b32 s61, s61, 10
        buffer_load_dwordx4 {vr(areg(pos),4)}, v{vAo[0]}, s[16:19], s61 offen sc1"""
        return [('V', t, f"a{pos}"), ('V', f"buffer_load_dwordx4 {vr(areg(pos)+4,4)}, v{vAo[1]}, s[16:19], s61 offen sc1", f"a{pos}")]
    def emit(item):
        if isinstance(item, tuple):
            k, text, tag = item; A(text); (VQ if k == 'V' else LQ).issue(tag)
        elif callable(item): item()
        else: A(item)
    def breads(pos):
        s = pos % NBF; area = AREA[pos % 9]
        R = []
        for c in range(4):
            for t in range(2):
                st, oo = (area + t * 2048) >> 16, (area + t * 2048) & 0xffff
                R.append(('L', f"ds_read_b64_tr_b16 {vr(BF[s]+4*c+2*t,2)}, v{RA+4*st+c} offset:{oo}", f"b{pos}_{c}"))
        FG = OPTV('frgran', 1)
        if pos <= 11 and (pos + 1) % FG == 0:
            if OPT('frw'):
                R.append(('L', f"v_mov_b32 v21, {pos+1}\nds_write_b32 v20, v21", 'fr'))
            else:
                R.append(('L', f"v_mov_b32 v21, {pos+1}\ns_mov_b64 exec, 1\nds_write_b32 v20, v21\ns_mov_b64 exec, -1", 'fr'))
        return R
    def full_pre(): A(f"ds_read_b32 v{vSv}, v{vSy}"); LQ.issue('fu')
    def full_chk(tgt):
        chk(f"P2_FULL{tgt}", 'fu', vSv, 0, f"s_cmp_lt_u32 s36, {tgt}")
    def step(pos, extra):
        s = pos % NBF
        k = 0
        for c in range(4):
            for b in range(2):
                LQ.wait(f"b{pos}_{c}")
                if c == 0: VQ.wait(f"a{pos}")
                a = ACC + 4*(c*2+b)
                A(f"v_mfma_f32_16x16x32_bf16 {vr(a,4)}, {vr(BF[s]+4*c,4)}, {vr(areg(pos)+4*b,4)}, {'0' if pos == 0 else vr(a,4)}")
                tgt = (len(extra) * (c*2+b+1) + 7) // 8
                while k < tgt: emit(extra[k]); k += 1
    if OPT('dbgquiet'):
        A.label("DBGQ")
        A("s_sleep 4\ns_memrealtime s[76:77]\ns_waitcnt lgkmcnt(0)\ns_sub_u32 s76, s76, s80\ns_cmp_lt_u32 s76, 1600\ns_cbranch_scc1 DBGQ")
    LA = NBF - 1
    if OPT('hiprio'):
        A("s_cmp_eq_u32 s31, 0\ns_cbranch_scc1 P2_NOPRIO\ns_setprio 1")
        A.label("P2_NOPRIO")
    full_pre(); seen_pre(); full_chk(6)
    for p in range(LA):
        for r in breads(p): emit(r)
    gate_chk('s42', "P2_G0")
    stamp(A, 'poll0')
    issued = OPTV('burst', 2)
    for p in range(issued):
        for g in aload(p): emit(g)
    gate = {4: 's43', 8: 's62', 12: 's56'}
    gstep = {4: OPTV('g4', 1), 8: OPTV('g8', 3), 12: OPTV('g12', 7)}
    if 0 in gstep.values(): seen_pre()
    fg = OPTV('fgran', 3)
    need = {6: 9}
    for q in range(9, 18, fg): need[q] = min(q + fg, 18)
    for pos in range(18):
        ex = []
        lim = min(pos + NRING, 18, issued + OPTV('rate', 2))
        while issued < lim:
            if issued in gate:
                if pos < gstep[issued] or ex: break
                assert pos == gstep[issued], (pos, issued)
                gate_chk(gate[issued], f"P2_G{issued}")
                if issued == 4: stamp(A, 'poll1')
                if issued == 12: stamp(A, 'poll3')
            ex += aload(issued); issued += 1
        assert issued > pos + 1 or issued == 18, (pos, issued)
        if pos + LA in need: full_chk(need[pos + LA])
        pre = []
        if pos + LA + 1 in need: pre.append(full_pre)
        if pos + 1 in gstep.values(): pre.append(seen_pre)
        nxt = breads(pos + LA) if pos + LA < 18 else []
        nxt = nxt[:4] + pre + nxt[4:]
        if pos == 16:
            ex += [('V', f"buffer_load_dwordx2 {vr(XR,2)}, v{vOut}, s[8:11], 0 offen", 'x'), ('V', f"buffer_load_dwordx2 {vr(XR+2,2)}, v{vOut+1}, s[8:11], 0 offen", 'x')]
            nxt = nxt + [('L', f"s_xor_b32 s36, s57, 4\nv_mov_b32 v2, s36\nds_read_b32 v3, v2", 'pf')]
        pr = {1: {0: 3, 3: 2, 6: 1, 10: 0}, 2: {0: 3, 4: 2, 8: 1, 12: 0}, 3: {0: 3, 2: 2, 4: 1, 6: 0, 9: 3, 11: 2, 13: 1, 15: 0}}.get(OPTV('pprio', 0), {})
        if pos in pr: A(f"s_setprio {pr[pos]}")
        stamp(A, f"p{pos}")
        mix = []
        for kk in range(max(len(nxt), len(ex))):
            if kk < len(ex): mix.append(ex[kk])
            if kk < len(nxt): mix.append(nxt[kk])
        step(pos, mix)
    stamp(A, 'p2loop')
    ldsspin(A, 2, 3, 0, 12, "P2_PART", pre=True)
    A(f"""
    s_lshl_b32 s36, s32, 1
    s_add_u32 s36, s36, s31
    s_lshl_b32 s36, s36, 11
    v_add_u32 v4, s36, v{vL16}
    """)
    for c in (1, 2, 3):
        A(f"""
        v_add_u32 v5, {AREA[c-1]}, v4
        ds_write_b128 v5, {vr(ACC+8*c,4)}
        ds_write_b128 v5, {vr(ACC+8*c+4,4)} offset:1024
        """)
    for c in (1, 2, 3):
        A(f"""
        s_sub_u32 s36, s32, {c}
        s_and_b32 s36, s36, 3
        s_lshl_b32 s36, s36, 1
        s_add_u32 s36, s36, s31
        s_lshl_b32 s36, s36, 11
        s_add_u32 s36, s36, {AREA[c-1]}
        v_add_u32 v{5+c}, s36, v{vL16}
        """)
    A("s_mov_b32 s8, s68\ns_mov_b32 s9, s69\ns_waitcnt vmcnt(0)")
    for b in range(2):
        for q in range(2):
            x = XR + 2*b + q; a = ACC + 4*b + 2*q
            A(f"v_lshlrev_b32 v10, 16, v{x}\nv_and_b32 v11, 0xffff0000, v{x}\nv_add_f32 v{a}, v{a}, v10\nv_add_f32 v{a+1}, v{a+1}, v11")
    A("s_waitcnt lgkmcnt(0)\ns_barrier")
    for c in (1, 2, 3):
        A(f"ds_read_b128 {vr(BF[0]+8*(c-1),4)}, v{5+c}\nds_read_b128 {vr(BF[0]+8*(c-1)+4,4)}, v{5+c} offset:1024")
    A("s_waitcnt lgkmcnt(0)")
    for b in range(2):
        for q in range(2):
            a = ACC + 4*b + 2*q; r = BF[0] + 4*b + 2*q
            A(f"""
            v_pk_add_f32 {vr(r,2)}, {vr(r,2)}, {vr(r+8,2)}
            v_pk_add_f32 {vr(a,2)}, {vr(a,2)}, {vr(r+16,2)}
            v_pk_add_f32 {vr(a,2)}, {vr(a,2)}, {vr(r,2)}
            v_cvt_pk_bf16_f32 v{XR+2*b+q}, v{a}, v{a+1}
            """)
        A(f"buffer_store_dwordx2 {vr(XR+2*b,2)}, v{vOut+b}, s[8:11], 0 offen")
    if STAMP:
        A("s_waitcnt vmcnt(0)")
        stamp(A, 'end')
        stamp_out(A, 's3', STAMPS)
    A.label("L_END")
    A("s_endpgm")

def loader(A):
    VQ = Q(A, 'vmcnt', 63)
    vA0, vA1, vBe, vBo, vX = 4, 5, 6, 7, 8
    vB2 = [10, 11, 12, 13]
    STG = 24
    RW = STG + 128
    if OPTV('lprio', 3): A(f"s_setprio {OPTV('lprio', 3)}")
    A(f"""
    s_and_b32 s30, s27, 3
    s_lshl_b32 s30, s30, 1
    s_add_u32 s30, s30, s36
    s_add_u32 s30, s30, s37
    s_lshl_b32 s38, s38, 2
    s_add_u32 s30, s30, s38
    s_and_b32 s30, s30, 7
    s_lshr_b32 s33, s27, 2
    v_lshrrev_b32 v14, 3, v0
    v_and_b32 v15, 7, v0
    v_lshrrev_b32 v16, 1, v14
    v_xor_b32 v17, v15, v16
    v_lshlrev_b32 v17, 4, v17
    s_lshl_b32 s41, s33, 6
    v_xor_b32 v17, s41, v17
    s_and_b32 s36, s32, 1
    s_lshl_b32 s36, s36, 6
    s_add_u32 s36, s36, s34
    s_lshr_b32 s43, s32, 1
    s_add_u32 s36, s36, s43
    s_lshl_b32 s36, s36, 10
    v_lshlrev_b32 v18, 11, v14
    v_add3_u32 v{vA0}, v18, v17, s36
    v_xor_b32 v{vA1}, 64, v{vA0}
    v_add_u32 v{vA1}, 0x4000, v{vA1}
    v_bfe_u32 v19, v0, 1, 2
    v_and_b32 v20, 1, v16
    v_xor_b32 v19, v19, v20
    v_lshlrev_b32 v19, 5, v19
    v_and_b32 v20, 1, v0
    v_lshl_or_b32 v19, v20, 4, v19
    s_lshl_b32 s36, s33, 1
    s_xor_b32 s42, s36, s32
    s_lshl_b32 s42, s42, 4
    v_add_u32 v21, s42, v14
    s_lshl_b32 s44, s32, 12
    s_mul_i32 s45, s32, 6144
    s_add_u32 s45, s45, {BQ}
    s_mov_b32 s15, 0x20000
    s_mov_b32 s99, 0x20000
    s_sub_u32 s37, s28, 8
    s_mul_i32 s38, s37, 448
    s_and_b32 s39, s37, 1
    s_lshl_b32 s46, s39, 6
    s_add_u32 s46, s46, s38
    s_cmp_eq_u32 s39, 0
    s_cselect_b32 s47, 384, 0
    s_add_u32 s47, s47, s38
    s_lshl_b32 s36, s28, 7
    s_cmp_lt_u32 s28, 8
    s_cselect_b32 s46, s36, s46
    s_mov_b32 s51, 3584
    s_cselect_b32 s51, 3072, s51
    s_mov_b32 s52, 128
    s_cselect_b32 s52, 1024, s52
    s_cselect_b32 s31, 0, -1
    s_lshl_b32 s14, s51, 9
    s_lshl_b32 s35, s51, 6
    v_mul_lo_u32 v{vBe}, v21, s51
    v_add3_u32 v{vBe}, v{vBe}, v19, s46
    v_xor_b32 v{vBo}, 64, v{vBe}
    s_lshl_b32 s36, s51, 3
    v_add_u32 v{vBo}, s36, v{vBo}
    s_lshl_b32 s36, s32, 2
    v_add_u32 v20, s36, v14
    v_lshrrev_b32 v22, 1, v20
    v_xor_b32 v22, v15, v22
    v_and_b32 v22, 7, v22
    v_lshlrev_b32 v22, 4, v22
    v_xor_b32 v22, s41, v22
    v_and_b32 v20, 7, v20
    v_lshl_add_u32 v22, v20, 11, v22
    s_add_u32 s36, s43, s34
    s_sub_u32 s36, s36, 16
    s_lshl_b32 s36, s36, 10
    v_add_u32 v{vX}, s36, v22
    v_lshrrev_b32 v20, 2, v0
    v_add_u32 v20, s42, v20
    v_mul_u32_u24 v20, 3584, v20
    v_bfe_u32 v22, v0, 1, 1
    v_lshrrev_b32 v23, 5, v0
    v_xor_b32 v22, v22, v23
    v_lshlrev_b32 v22, 5, v22
    v_and_b32 v21, 1, v0
    v_lshl_or_b32 v22, v21, 4, v22
    v_add3_u32 v20, v20, v22, s47
    v_bfi_b32 v{vX}, s31, v20, v{vX}
    s_lshl_b32 s67, s28, 3
    s_lshl_b32 s36, s32, 1
    s_add_u32 s67, s67, s36
    s_and_b32 s66, s67, 63
    s_lshl_b32 s66, s66, 1
    s_lshr_b32 s36, s67, 6
    s_add_u32 s66, s66, s36
    s_add_u32 s66, s66, s34
    s_lshl_b32 s66, s66, 10
    s_add_u32 s67, s67, s34
    v_and_b32 v22, 0x1f0, v{vL16}
    v_lshl_add_u32 v22, v23, 11, v22
    s_lshl_b32 s36, s32, 9
    s_add_u32 s36, s36, 16384
    s_lshl_b32 s38, s32, 10
    s_add_u32 s39, s36, {ASL}
    s_add_u32 s40, s36, {2*ASL}
    s_add_u32 s37, s38, {PAIRO[0]}
    s_add_u32 s41, s38, {PAIRO[1]}
    s_add_u32 s42, s38, {PAIRO[2]}
    s_cmp_lt_u32 s28, 8
    s_cselect_b32 s37, s36, s37
    s_cselect_b32 s38, s39, s41
    s_cselect_b32 s39, s40, s42
    s_cselect_b32 s98, s10, s14
    s_mov_b32 s40, 128
    s_cselect_b32 s40, s40, s35
    s_waitcnt lgkmcnt(0)
    s_mov_b32 s8, s4
    s_mov_b32 s9, s5
    s_cselect_b32 s12, s6, s20
    s_cselect_b32 s13, s7, s21
    s_cselect_b32 s96, s4, s20
    s_cselect_b32 s97, s5, s21
    """)
    lstamp(A, 'lstart')
    def dma(st):
        sl = st % 3; t = f"st{st}"
        A(f"""
        s_lshl_b32 s61, s30, 7
        s_add_u32 m0, s44, {sl*ASL}
        s_mul_i32 s62, s30, s35
        buffer_load_dwordx4 v{vA0}, s[8:11], s61 offen lds
        s_add_u32 m0, s45, {sl*BQS}
        s_add_u32 s63, s61, 0x8000
        buffer_load_dwordx4 v{vBe}, s[12:15], s62 offen lds
        s_add_u32 m0, s44, {sl*ASL+1024}
        s_add_u32 s41, s62, s52
        buffer_load_dwordx4 v{vA1}, s[8:11], s61 offen lds
        s_add_u32 m0, s45, {sl*BQS+1024}
        s_add_u32 s42, s41, s52
        buffer_load_dwordx4 v{vBe}, s[12:15], s41 offen lds
        s_add_u32 m0, s44, {sl*ASL+2048}
        s_mul_i32 s43, s30, s40
        buffer_load_dwordx4 v{vA0}, s[8:11], s63 offen lds
        s_add_u32 m0, s45, {sl*BQS+2048}
        s_add_u32 s30, s30, 1
        buffer_load_dwordx4 v{vBe}, s[12:15], s42 offen lds
        s_add_u32 m0, s44, {sl*ASL+3072}
        s_and_b32 s30, s30, 7
        buffer_load_dwordx4 v{vA1}, s[8:11], s63 offen lds
        s_add_u32 m0, s45, {sl*BQS+3072}
        s_nop 0
        buffer_load_dwordx4 v{vBo}, s[12:15], s62 offen lds
        s_add_u32 m0, s45, {sl*BQS+4096}
        s_nop 0
        buffer_load_dwordx4 v{vBo}, s[12:15], s41 offen lds
        s_add_u32 m0, s45, {sl*BQS+5120}
        s_nop 0
        buffer_load_dwordx4 v{vBo}, s[12:15], s42 offen lds
        s_mov_b32 m0, s{37+sl}
        s_mov_b32 exec_hi, s31
        buffer_load_dwordx4 v{vX}, s[96:99], s43 offen lds
        s_mov_b32 exec_hi, -1
        """)
        for _ in range(11): VQ.issue(t)
    dma(0)
    A(f"""
    buffer_load_dwordx4 {vr(RW,4)}, v22, s[8:11], s66 offen
    buffer_load_dwordx4 {vr(RW+4,4)}, v22, s[8:11], s66 offen offset:512
    """)
    VQ.issue('row'); VQ.issue('row')
    p2_sgprs(A)
    A(f"""
    s_mov_b32 s72, s64
    s_mov_b32 s73, s65
    s_mov_b32 s74, {512*1024}
    s_mov_b32 s75, 0x20000
    s_mov_b32 s76, s22
    s_mov_b32 s77, s23
    s_mov_b32 s78, {1792*1024}
    s_mov_b32 s79, 0x20000
    v_bfe_u32 v20, v0, 1, 2
    v_lshrrev_b32 v22, 4, v0
    v_xor_b32 v20, v20, v22
    v_lshlrev_b32 v20, 5, v20
    v_lshl_or_b32 v20, v21, 4, v20
    s_lshl_b32 s36, s49, 7
    v_add_u32 v20, s36, v20
    v_lshl_add_u32 v{vB2[1]}, v14, 10, v20
    v_lshl_add_u32 v{vB2[0]}, v23, 12, v{vB2[1]}
    v_add_u32 v9, s44, v{vL16}
    v_mov_b32 v21, {LCNT}
    v_mov_b32 v16, 0
    v_mov_b32 v17, 0
    v_mov_b32 v18, 0
    v_mov_b32 v19, 0
    ds_write_b128 v21, v[16:19]
    ds_write_b128 v21, v[16:19] offset:16
    ds_write_b128 v21, v[16:19] offset:32
    ds_write_b128 v21, v[16:19] offset:48
    v_mov_b32 v12, {LFREE}
    ds_write_b128 v12, v[16:19]
    ds_write_b128 v12, v[16:19] offset:16
    s_lshl_b32 s36, s32, 3
    v_add_u32 v12, s36, v12
    s_lshl_b32 s36, s32, 2
    s_add_u32 s36, s36, {LFULL}
    v_mov_b32 v13, s36
    """)
    def pf():
        A(f"""
        s_lshl_b32 s36, s2, 2
        s_add_u32 s36, s36, s32
        s_lshl_b32 s42, s36, 9
        s_mul_i32 s43, s36, 1792
        v_lshlrev_b32 v20, 7, v0
        s_mov_b64 exec, 15
        buffer_load_dword v14, v20, s[72:75], s42 offen
        s_mov_b64 exec, 0x3fff
        buffer_load_dword v14, v20, s[76:79], s43 offen
        s_mov_b64 exec, -1
        """)
        VQ.issue('pf'); VQ.issue('pf')
    if OPTV('pf', 2) == 1: pf()
    dma(1)
    if OPTV('pf', 2) == 2: pf()
    A(f"""
    s_lshl_b32 s66, s26, 4
    s_add_u32 s66, s66, s28
    s_lshl_b32 s66, s66, 7
    s_add_u32 s66, s66, {FLG}
    s_lshl_b32 s36, s32, 2
    s_add_u32 s36, s36, s66
    s_mov_b64 exec, 1
    buffer_store_dword v16, v16, s[16:19], s36 offen sc1
    s_mov_b64 exec, -1
    """)
    VQ.issue('pub')
    VQ.wait('st0')
    lstamp(A, 'lfirst')
    A("s_waitcnt lgkmcnt(0)\ns_barrier")
    def rowstats():
        VQ.wait('row')
        A("s_mov_b32 s36, 0x3f803f80")
        for q in range(8):
            A(f"v_dot2c_f32_bf16 v16, s36, v{RW+q}\nv_dot2c_f32_bf16 v17, v{RW+q}, v{RW+q}")
        for d in ("quad_perm:[1,0,3,2]", "quad_perm:[2,3,0,1]", "row_half_mirror", "row_mirror"):
            for x in (16, 17): A(f"v_add_f32_dpp v{x}, v{x}, v{x} {d} row_mask:0xf bank_mask:0xf")
        A(f"""
        v_mov_b32 v18, v16
        v_mov_b32 v19, v17
        v_permlane16_swap_b32 v18, v16
        v_permlane16_swap_b32 v19, v17
        v_add_f32 v16, v16, v18
        v_add_f32 v17, v17, v19
        v_mul_f32 v16, 0x3b000000, v16
        v_mul_f32 v17, 0x3b000000, v17
        v_fma_f32 v17, -v16, v16, v17
        v_max_f32 v17, 0, v17
        v_cvt_pk_bf16_f32 v16, v16, v17
        v_and_b32 v17, 0xffff0000, v16
        v_lshlrev_b32 v16, 16, v16
        v_add_f32 v17, 0x3727c5ac, v17
        v_cvt_pk_bf16_f32 v17, v17, v17
        v_and_b32 v17, 0xffff0000, v17
        v_sqrt_f32 v17, v17
        v_cvt_pk_bf16_f32 v17, v17, v17
        v_and_b32 v17, 0xffff0000, v17
        v_rcp_f32 v18, v17
        v_sub_f32 v16, 0, v16
        v_mov_b32 v17, v16
        v_mov_b32 v19, v18
        s_lshl_b32 s36, s67, 4
        s_add_u32 s36, s36, {ST16}
        v_lshlrev_b32 v22, 4, v23
        s_mov_b32 exec_lo, 1
        s_mov_b32 exec_hi, 1
        buffer_store_dwordx4 v[16:19], v22, s[16:19], s36 offen sc1
        s_mov_b64 exec, -1
        """)
        VQ.issue('pub')
    if not OPT('rowearly'):
        dma(2); rowstats()
    else:
        rowstats(); dma(2)
    ND = 6
    def sreg(pos): return STG + 16 * ((pos - ND) % 9)
    def unit(pos, pace=0, direct=False):
        t, wo, nat = p2_sb(pos, 's60')
        srd = 's[72:75]' if wo else 's[76:79]'
        offs = [0, 16, 4, 20] if nat else [0, 8, 16, 24]
        v = vB2[0] if nat else vB2[1]
        A(t + "\ns_lshl_b32 s60, s60, 15")
        for o in range(4):
            so = 's60'
            if o: A(f"s_add_u32 s63, s60, {offs[o]*1024}"); so = 's63'
            if pace and len(VQ.q) >= pace:
                A(f"s_waitcnt vmcnt({pace-1})"); del VQ.q[:len(VQ.q) - (pace-1)]
            if pos < ND or direct:
                A(f"s_add_u32 m0, s44, {AREA[pos % 9] + 1024*o}\nbuffer_load_dwordx4 v{v}, {srd}, {so} offen lds"); VQ.issue(f"d{pos}" if direct else 'u0')
            else:
                A(f"buffer_load_dwordx4 {vr(sreg(pos)+4*o,4)}, v{v}, {srd}, {so} offen"); VQ.issue(f"u{pos}")
    def wr(pos):
        VQ.wait(f"u{pos}")
        A(f"v_add_u32 v20, {AREA[pos % 9]}, v9")
        for o in range(4):
            A(f"ds_write_b128 v20, {vr(sreg(pos)+4*o,4)} offset:{1024*o}")
    def setfull(n):
        A(f"v_mov_b32 v22, {n}\ns_mov_b64 exec, 1\nds_write_b32 v13, v22\ns_mov_b64 exec, -1")
    pubst = OPTV('pubst', 2)
    sv = OPTV('sched', 1)
    sched = {0: {},
             1: {1: [10], 2: [9], 3: [8], 4: [7]},
             2: {2: [10], 3: [9], 4: [8]},
             3: {4: [10]},
             4: {0: [10], 1: [9], 2: [8], 3: [7], 4: [0]},
             5: {3: [8], 4: [7]},
             6: {4: [8]},
             }[sv]
    done = set()
    C = sreg(14)
    for st in range(6):
        tags = {f"st{st+1}"} | ({'pub'} if st == pubst else set()) | ({'st7'} if st == 5 else set())
        VQ.wait(tags)
        A("s_barrier")
        if st == pubst:
            A(f"""
            s_cmp_lg_u32 s32, 0
            s_cbranch_scc1 LD_NOSIG
            s_and_b32 s36, s2, 15
            s_lshl_b32 s36, s36, 4
            v_mov_b32 v20, s36
            v_mov_b32 v22, 1
            s_mov_b64 exec, 1
            global_atomic_add v20, v22, s[70:71] sc1
            s_mov_b64 exec, -1
            """)
            A.label("LD_NOSIG")
            VQ.issue('sig', sure=False)
        if st + 3 <= 7: dma(st + 3)
        for pos in sched.get(st, []): unit(pos); done.add(pos)
        if st == 4:
            A(f"""
            v_and_b32 v20, 0xf0, v{vL16}
            global_load_dword v22, v20, s[70:71] sc1
            s_mul_i32 s36, s32, 36
            v_add_u32 v4, s36, v0
            v_lshlrev_b32 v5, 4, v4
            s_sub_u32 s41, s26, 1
            s_max_i32 s41, s41, 0
            s_sub_u32 s41, s41, s26
            s_lshl_b32 s41, s41, 11
            s_add_u32 s41, s41, {56*16}
            v_and_b32 v6, 0x70, v5
            v_and_b32 v7, 8, v4
            v_lshl_add_u32 v6, v7, 7, v6
            v_add_u32 v6, s41, v6
            v_cmp_gt_u32 vcc, 128, v4
            v_cndmask_b32 v6, v6, v5, vcc
            s_lshl_b32 s41, s26, 11
            s_add_u32 s41, s41, {ST16}
            v_add_u32 v6, s41, v6
            v_add_u32 v5, {LROW}, v5
            s_lshl_b32 s42, s28, 14
            s_lshl_b32 s36, s32, 8
            s_add_u32 s42, s42, s36
            s_add_u32 s42, s42, {CSP}
            v_lshrrev_b32 v7, 4, v0
            v_lshl_add_u32 v7, v7, 12, v20
            s_add_u32 s36, s36, {LCS}
            v_add_u32 v15, s36, v20
            """)
            VQ.issue('cnt')
    lstamp(A, 'lbar5')
    NE = OPTV('nearly', 6)
    order = [p for p in [0, 1, 2, 6, 7, 8] + list(range(9, 9 + NE)) if p not in done]
    late = [p for p in range(9, 15) if p not in done and p not in order]
    has14 = 14 in order
    if has14: order.remove(14)
    VQ.wait('cnt')
    A("s_mov_b32 s61, 0\ns_branch LD_CNT_T")
    A.label("LD_CNT")
    A(f"""
    global_load_dword v22, v20, s[70:71] sc1
    s_add_u32 s61, s61, 1
    s_cmp_ge_u32 s61, {SPIN}
    s_cbranch_scc1 LD_CNTOK
    s_waitcnt vmcnt(0)
    """)
    A.label("LD_CNT_T")
    A(f"""
    v_cmp_gt_u32 vcc, 16, v22
    s_nop 1
    s_cbranch_vccnz LD_CNT
    """)
    A.label("LD_CNTOK")
    lstamp(A, 'lcnt')
    A(f"s_mov_b32 exec_hi, 15\nbuffer_load_dwordx4 v[16:19], v6, s[16:19], 0 offen sc1\ns_mov_b32 exec_hi, -1"); VQ.issue('rs')
    for o in range(4):
        A(f"buffer_load_dwordx4 {vr(C+4*o,4)}, v7, s[16:19], s42 offen offset:{1024*o} sc1"); VQ.issue('cs')
    nmid = OPTV('nmid', 1)
    for pos in order[:nmid]: unit(pos)
    VQ.wait('rs')
    A(f"v_lshlrev_b32 v4, 2, v4\nv_add_u32 v4, {LSM}, v4\ns_mov_b32 exec_hi, 15\nds_write_b128 v5, v[16:19]\nds_write_b32 v4, v16\nds_write_b32 v4, v18 offset:576\ns_mov_b32 exec_hi, -1")
    VQ.wait('cs')
    for q in range(4):
        A(f"v_add_f32 v{C+q}, v{C+q}, v{C+4+q}\nv_add_f32 v{C+8+q}, v{C+8+q}, v{C+12+q}")
    for q in range(4): A(f"v_add_f32 v{C+q}, v{C+q}, v{C+8+q}")
    for sw in ("v_permlane32_swap_b32", "v_permlane16_swap_b32"):
        for q in range(4): A(f"v_mov_b32 v{C+4+q}, v{C+q}")
        for q in range(4): A(f"{sw} v{C+4+q}, v{C+q}")
        for q in range(4): A(f"v_add_f32 v{C+q}, v{C+q}, v{C+4+q}")
    A(f"ds_write_b128 v15, {vr(C,4)}")
    A(f"v_mov_b32 v22, 1\ns_mov_b64 exec, 1\nds_add_u32 v21, v22 offset:8\ns_mov_b64 exec, -1\ns_waitcnt lgkmcnt(0)")
    lstamp(A, 'lstat')
    for pos in order[nmid:] + ([14] if has14 else []): unit(pos)
    ldsspin(A, 21, 22, 12, 8, "LD_REL6")
    if len(VQ.q) > 50:
        A("s_waitcnt vmcnt(40)"); del VQ.q[:len(VQ.q) - 40]
    for pos in (3, 4, 5): unit(pos)
    lstamp(A, 'lu11')
    p2_masks(A)
    A(f"""
    v_and_b32 v4, 15, v0
    v_lshlrev_b32 v4, 7, v4
    v_lshrrev_b32 v5, 4, v0
    v_lshl_add_u32 v4, v5, 2, v4
    s_mov_b32 s45, 0
    """)
    def service(lab, rd, tgt, allseen=False):
        A(f"s_mov_b32 s61, 0\ns_branch {lab}_IN")
        A.label(lab)
        A("s_sleep 1")
        A.label(f"{lab}_IN")
        A(f"""
        s_cmp_eq_u32 s45, s46
        s_cbranch_scc1 {lab}_NP
        s_mov_b64 exec, s[46:47]
        buffer_load_dword v5, v4, s[16:19], s41 offen sc1
        s_waitcnt vmcnt(0)
        v_cmp_eq_u32 vcc, 1, v5
        s_mov_b64 exec, 1
        s_mov_b32 s45, vcc_lo
        v_mov_b32 v6, s45
        ds_write_b32 v13, v6 offset:16
        s_mov_b64 exec, -1
        """)
        A.label(f"{lab}_NP")
        A(f"""
        s_add_u32 s61, s61, 1
        s_cmp_ge_u32 s61, {SPIN}
        s_cbranch_scc1 {lab}_OK
        """)
        if allseen:
            A(f"s_cmp_lg_u32 s45, s46\ns_cbranch_scc1 {lab}")
        else:
            A(f"""
            {rd}
            s_waitcnt lgkmcnt(0)
            v_min_u32 v16, v16, v17
            v_readfirstlane_b32 s36, v16
            s_cmp_lt_u32 s36, {tgt}
            s_cbranch_scc1 {lab}
            """)
        A.label(f"{lab}_OK")
    VQ.wait('u0')
    setfull(6)
    ldsspin(A, 21, 22, 4, 8, "LD_REL")
    for pos in (6, 7, 8): wr(pos)
    setfull(9)
    A("s_waitcnt lgkmcnt(0)")
    lstamp(A, 'lwr')
    staged = set(range(9, 9 + NE)) | {p for p in done if p >= 9}
    pend = None
    for pos in range(9, 18):
        service(f"LD_FR{pos}", "ds_read_b64 v[16:17], v12", pos - 8)
        if pos in staged:
            wr(pos)
            if pend is not None: VQ.wait(f"d{pend}"); pend = None
            setfull(pos + 1)
        else:
            unit(pos, direct=True)
            if pend is not None: VQ.wait(f"d{pend}"); setfull(pend + 1)
            pend = pos
    if pend is not None: VQ.wait(f"d{pend}"); setfull(pend + 1)
    lstamp(A, 'lu17')
    service("LD_LAST", "", 0, allseen=True)
    A("s_waitcnt lgkmcnt(0)")
    if STAMP: stamp_out(A, 's32', STAMPS + 0x10000)
    A("s_endpgm")

def main():
    out = sys.argv[1]
    A = Asm()
    A.nopk = lambda ins: 'op_sel' in ins.mods
    if OPT('nopk'): A.nopk = lambda ins: True
    A.raw(HEADER.rstrip())
    if STAMP: A.raw("; stamps: " + " ".join(SSET) + "\n; lstamps: " + " ".join(LSET) + ("\n; nomix" if OPT('nomix') else ""))
    A.raw(f"; @launch grid=(256,1,1) block=(768,1,1) lds={LDS_TOTAL}")
    A.raw('.amdgcn_target "amdgcn-amd-amdhsa--gfx950"\n.text')
    prologue(A)
    phase2(A)
    A.raw(f""".section .rodata,"a"
.p2align 6
.amdhsa_kernel {NAME}_kernel
  .amdhsa_next_free_vgpr {NVGPR}
  .amdhsa_next_free_sgpr 100
  .amdhsa_accum_offset {NVGPR}
  .amdhsa_group_segment_fixed_size 0
  .amdhsa_kernarg_size 72
  .amdhsa_user_sgpr_count 2
  .amdhsa_user_sgpr_kernarg_segment_ptr 1
  .amdhsa_system_sgpr_workgroup_id_x 1
.end_amdhsa_kernel""")
    open(out, "w").write(A.text())
    print("nops inserted:", A.nops)
main()
```

```python
import sys
from asmlib import Asm

NAME = "parallel_sum__sliding_local_dilated__dense_activation_silu__prompt"
HEADER = open('cdna_kernels/' + NAME + '.s.ref').read().split('; Override')[0]
OPT = lambda n: ('--' + n) in sys.argv
def OPTV(n, d):
    for a in sys.argv:
        if a.startswith('--' + n + '='): return int(a.split('=')[1])
    return d
STAMP = OPT('stamp')

ST16 = 0xA00000
CSP = 0xA20000
FLG = 0xA80000
WS_USE = 0xB00000
STAMPS = 0x1000000
K = 1024
BLK = 16 * K
QSL = [42 * K, 84 * K, 0]
XB = [3, 4, 0, 1, 2, 3, 4, 5]
WR = 6
XSL = 144 * K
LSM = XSL
LROW = 156 * K; LCS = LROW + 2304
LCNT = 160 * K - 512
oFULL, oSEEN, oFREE, oR, oH, oWF, oLF = 16, 32, 48, 96, 128, 160, 192
assert LCS + 1024 <= LCNT
W2O = {2: 3*BLK, 3: 2*BLK, 4: 0, 5: BLK, 6: 3*BLK, 7: 2*BLK}
LDS_TOTAL = 163840
LOG2E = 0x3fb8aa3b
SPIN = 0x40000
NVGPR = 168
PUBST = OPTV('pubst', 0)
ORDER = OPTV('order', 2)

def vr(a, n): return f"v[{a}:{a+n-1}]" if n > 1 else f"v{a}"

class Q:
    def __init__(self, A, name, mx): self.A = A; self.q = []; self.name = name; self.mx = mx
    def issue(self, tag, sure=True):
        self.q.append((tag, sure))
        assert self.name != 'vmcnt' or len(self.q) <= 63, "vmcnt overflow"
    def wait_str(self, tags):
        tags = tags if isinstance(tags, (set, list, tuple)) else {tags}
        idx = -1
        for i, (t, s) in enumerate(self.q):
            if t in tags: idx = i
        if idx < 0: return None
        n = sum(1 for (t, s) in self.q[idx+1:] if s)
        self.q = self.q[idx+1:]
        return f"{self.name}({min(n, self.mx)})"
    def wait(self, tags):
        s = self.wait_str(tags)
        if s: self.A(f"s_waitcnt {s}")
    def drain(self): self.q = []

SETS = {'a': ['start', 'first', 'loop', 'epi', 'flag', 'poll0', 'p2loop', 'end'],
        'b': ['start', 'first', 'bar0', 'bar1', 'bar5', 'loop', 'stat', 'epi'],
        'c': ['start', 'first', 'bar0', 'bar1', 'bar2', 'bar3', 'bar4', 'bar5'],
        'd': ['start', 'flag', 'poll0', 'p1', 'p4', 'p8', 'p14', 'p2loop']}
SETS['h'] = ['start', 'bar4', 'hgo', 'h6', 'h7', 'loop', 'stat', 'epi']
SSET = SETS['h' if OPT('sh') else 'b' if OPT('sb') else 'c' if OPT('sc') else 'd' if OPT('sd') else 'a']
LSET = ['lstart', 'lfirst', 'lbar5', 'lstat', 'lf1', 'lf9', 'lwin', 'lu17'] if not OPT('sh') else ['lbar5', 'lcnt', 'lstat', 'lgo', 'g2', 'g3', 'g5', 'g7']
def _st(A, idx): A(f"{'s_memtime' if OPT('cyc') else 's_memrealtime'} s[{80+2*idx}:{81+2*idx}]\ns_waitcnt lgkmcnt(0)")
def stamp(A, name):
    if STAMP and name in SSET: _st(A, SSET.index(name))
def lstamp(A, name):
    if STAMP and name in LSET: _st(A, LSET.index(name))
def stamp_out(A, widx, base):
    A(f"s_lshl_b32 s36, s2, 8\ns_lshl_b32 s42, {widx}, 5\ns_add_u32 s36, s36, s42\ns_add_u32 s36, s36, {base}\nv_mov_b32 v6, 0")
    for i in range(8): A(f"v_mov_b32 v{24+i}, s{80+2*i}")
    A("buffer_store_dwordx4 v[24:27], v6, s[16:19], s36 offen\nbuffer_store_dwordx4 v[28:31], v6, s[16:19], s36 offen offset:16")

ONESK = 's40'
ATAB = [72, 73, 74, 75, 76, 77, 78, 79, 96, 97, 98, 99, 12, 13, 14, 15, 20, 21]
vL16, vS, vG = 1, 2, 3

def p2_sgprs(A):
    A(f"""
    s_lshl_b32 s48, s24, 2
    s_add_u32 s48, s48, s29
    s_mov_b32 s49, s27
    s_and_b32 s50, s29, {OPTV('mmask', 3)}
    s_lshl_b32 s50, s50, 1
    s_xor_b32 s50, s27, s50
    s_and_b32 s50, s50, {OPTV('omask', 7)}
    s_and_b32 s54, s50, 3
    s_and_b32 s55, s50, 1
    s_lshl_b32 s53, s32, 2
    s_mul_i32 s58, s32, 14
    """)
def p2_masks(A):
    A(f"""
    s_lshr_b32 s41, s48, 1
    s_lshl_b32 s41, s41, 11
    s_add_u32 s41, s41, {FLG}
    s_and_b32 s43, s48, 1
    s_lshl_b32 s36, s32, 1
    s_lshl_b32 s43, s43, 4
    s_add_u32 s43, s43, s36
    s_lshl_b32 s42, 3, s43
    s_lshr_b32 s43, s50, 2
    s_add_u32 s43, s43, s36
    s_add_u32 s43, s43, 8
    s_xor_b32 s62, s43, 1
    s_lshl_b32 s43, 1, s43
    s_lshl_b32 s62, 1, s62
    s_add_u32 s36, s36, 24
    s_lshl_b32 s56, 3, s36
    s_or_b32 s46, s42, s43
    s_or_b32 s46, s46, s62
    s_or_b32 s46, s46, s56
    s_mov_b32 s47, 0
    """)
def p2_sb(pos, dst, extra=0):
    if ORDER == 1 and pos >= 8: pos = pos + 6 if pos < 12 else pos - 4
    if ORDER == 2: pos = pos + 14 if pos < 4 else pos - 4
    if pos < 8:
        t = f"s_xor_b32 {dst}, s50, {pos}\ns_and_b32 s36, {dst}, 4\ns_add_u32 {dst}, {dst}, s36\ns_add_u32 {dst}, {dst}, s58"
        if extra: t += f"\ns_add_u32 {dst}, {dst}, {extra}"
        return (t, False, False)
    if pos < 12:
        t = f"s_xor_b32 {dst}, s54, {pos-8}\ns_and_b32 s36, {dst}, 2\ns_mul_i32 s36, s36, 3\ns_add_u32 {dst}, {dst}, s36\ns_add_u32 {dst}, {dst}, s58\ns_add_u32 {dst}, {dst}, {4+extra}"
        return (t, False, False)
    if pos < 14:
        return (f"s_xor_b32 {dst}, s55, {pos-12}\ns_add_u32 {dst}, {dst}, s58\ns_add_u32 {dst}, {dst}, {6+extra}", False, True)
    return (f"s_xor_b32 {dst}, s54, {pos-14}\ns_add_u32 {dst}, {dst}, s53", True, True)

COLD = []
def cold(lab, text): COLD.append((lab, text))
def emit_cold(A):
    for lab, text in COLD:
        A.label(lab); A.reset_hist()
        for ln in text.strip().split('\n'):
            ln = ln.strip()
            if ln.endswith(':'): A.label(ln[:-1])
            elif ln: A(ln)
def chk(A, LQ, lab, tag, va, vt, off, test):
    LQ.wait(tag)
    A(f"v_readfirstlane_b32 s36, v{vt}\n{test}\ns_cbranch_scc1 {lab}")
    A.label(f"{lab}_OK")
    cold(lab, f"""
    s_mov_b32 s60, 0
    {lab}_L:
    s_sleep 1
    ds_read_b32 v{vt}, v{va} offset:{off}
    s_add_u32 s60, s60, 1
    s_cmp_ge_u32 s60, {SPIN*4}
    s_cbranch_scc1 {lab}_OK
    s_waitcnt lgkmcnt(0)
    v_readfirstlane_b32 s36, v{vt}
    {test}
    s_cbranch_scc1 {lab}_L
    s_branch {lab}_OK
    """)

def prologue(A):
    A.raw(f".globl {NAME}_kernel\n.p2align 8\n.type {NAME}_kernel,@function\n{NAME}_kernel:")
    A(f"""
    s_cmp_ge_u32 s2, 256
    s_cbranch_scc1 L_END
    s_load_dwordx4 s[4:7], s[0:1], 0
    s_load_dwordx4 s[20:23], s[0:1], 32
    s_load_dwordx2 s[16:17], s[0:1], 64
    s_load_dwordx2 s[64:65], s[0:1], 16
    s_load_dwordx4 s[68:71], s[0:1], 48
    v_lshrrev_b32 v4, 6, v0
    v_and_b32 v0, 63, v0
    v_readfirstlane_b32 s3, v4
    s_and_b32 s24, s2, 7
    s_lshr_b32 s25, s2, 3
    s_and_b32 s36, s24, 1
    s_lshl_b32 s26, s36, 3
    s_and_b32 s27, s25, 7
    s_add_u32 s26, s26, s27
    s_lshr_b32 s37, s24, 1
    s_lshr_b32 s29, s25, 3
    s_lshl_b32 s28, s37, 1
    s_and_b32 s38, s29, 1
    s_add_u32 s28, s28, s38
    s_and_b32 s39, s29, 2
    s_lshl_b32 s39, s39, 2
    s_add_u32 s28, s28, s39
    s_lshl_b32 s34, s26, 7
    s_and_b32 s32, s3, 3
    s_mov_b32 s10, 0x200000
    s_mov_b32 s11, 0x20000
    s_mov_b32 s18, {0x2000000 if STAMP else WS_USE}
    s_mov_b32 s19, 0x20000
    v_lshlrev_b32 v{vL16}, 4, v0
    s_cmp_lt_u32 s3, 8
    s_cbranch_scc1 L_COMPUTE
    """)
    loader(A)
    A.label("L_COMPUTE"); A.reset_hist()
    A(f"""
    s_lshr_b32 s31, s3, 2
    s_and_b32 s35, s3, 1
    s_mov_b32 s40, 0x3f803f80
    v_and_b32 v{vS}, 15, v0
    v_lshrrev_b32 v{vG}, 4, v0
    v_bfe_u32 v47, v0, 2, 2
    v_and_b32 v48, 3, v0
    v_lshrrev_b32 v44, 1, v{vS}
    v_xor_b32 v44, v{vG}, v44
    v_lshlrev_b32 v44, 4, v44
    v_lshl_or_b32 v44, v{vS}, 7, v44
    v_lshrrev_b32 v45, 1, v47
    v_and_b32 v49, 1, v{vG}
    v_lshl_or_b32 v45, v49, 1, v45
    v_lshlrev_b32 v46, 7, v47
    v_lshl_add_u32 v46, v48, 3, v46
    s_lshl_b32 s66, s26, 4
    s_add_u32 s66, s66, s28
    s_lshl_b32 s66, s66, 7
    s_add_u32 s66, s66, {FLG}
    """)
    p2_sgprs(A)
    A("s_waitcnt lgkmcnt(0)\ns_mov_b32 s8, s4\ns_mov_b32 s9, s5")
    stamp(A, 'start')
    for pos in range(18):
        t, wo, nat = p2_sb(pos, f"s{ATAB[pos]}", 16)
        A(t + f"\ns_lshl_b32 s{ATAB[pos]}, s{ATAB[pos]}, 10")
    A("s_cmp_ge_u32 s28, 8\ns_cbranch_scc1 L_FFN")
    path(A, 'qkv')
    A.label("L_FFN"); A.reset_hist()
    A(f"""
    s_sub_u32 s37, s28, 8
    s_and_b32 s39, s37, 1
    s_cmp_ge_u32 s3, 4
    s_cbranch_scc1 L_FFN3
    """)
    path(A, 'ffn4')
    A.label("L_FFN3"); A.reset_hist()
    path(A, 'ffn3')

def path(A, kind):
    P = kind.upper()
    qkv = kind == 'qkv'
    nA = 5 if qkv else 4
    nB = 4 if kind == 'ffn4' else 3
    LQ = Q(A, 'lgkmcnt', 15)
    CSr = 12
    ON = 24 if qkv else 28
    F = [40, 72]
    ACC = 104
    vC, vT = 36, 37
    if qkv:
        aA = [[4, 5], [32, 33]]; aH = [[6, 7], [9, 11]]; aB = [[8], [39]]
    else:
        aA = [[4, 5], [32, 33]]; aB = [[6, 7, 8, 9], [10, 11, 34, 35]] if kind == 'ffn4' else [[6, 7, 8], [34, 35]]
    def fA(s, i): return F[s] + 4 * i
    def fB(s, j): return F[s] + 4 * (nA + j)
    hs = 's31' if qkv else 's35'
    A(f"""
    s_lshl_b32 s36, {hs}, 13
    v_add_u32 v{aA[0][0]}, s36, v44
    v_xor_b32 v{aA[0][1]}, 64, v{aA[0][0]}
    v_add_u32 v{aA[1][0]}, 0x10000, v{aA[0][0]}
    v_add_u32 v{aA[1][1]}, 0x10000, v{aA[0][1]}
    """)
    if qkv:
        A(f"""
        v_and_b32 v36, 7, v{vS}
        v_lshrrev_b32 v37, 1, v36
        v_xor_b32 v37, v{vG}, v37
        v_lshlrev_b32 v37, 4, v37
        v_lshl_or_b32 v37, v36, 7, v37
        s_mul_i32 s36, s31, {1024+64}
        s_add_u32 s36, s36, 16384
        v_xor_b32 v{aH[0][0]}, s36, v37
        v_xor_b32 v{aH[0][1]}, 64, v{aH[0][0]}
        v_mul_u32_u24 v37, 3072, v{vG}
        v_add_u32 v46, v46, v37
        v_xor_b32 v36, s32, v45
        v_lshl_add_u32 v{aB[0][0]}, v36, 5, v46
        s_lshl_b32 s67, s32, 6
        """)
        cbo = [0, 256, 512]
    elif kind == 'ffn4':
        A(f"s_lshr_b32 s36, s3, 1\ns_lshl_b32 s67, s36, 8\ns_lshl_b32 s36, s36, 10\nv_mul_u32_u24 v37, 3072, v{vG}\nv_add3_u32 v46, v46, v37, s36")
        for c in range(4):
            A(f"v_xor_b32 v36, {c}, v45\nv_lshl_add_u32 v{aB[0][c]}, v36, 5, v46\nv_add_u32 v{aB[1][c]}, 0x10000, v{aB[0][c]}")
        cbo = [0, 64, 128, 192]
    else:
        A(f"s_and_b32 s63, s3, 2\ns_lshr_b32 s36, s63, 1\ns_lshl_b32 s67, s63, 6\nv_mul_u32_u24 v37, 3072, v{vG}\nv_add_u32 v46, v46, v37")
        for c in range(2):
            A(f"v_xor_b32 v36, s63, v45\nv_xor_b32 v36, {c}, v36\nv_lshl_add_u32 v{aB[0][c]}, v36, 5, v46\nv_add_u32 v{aB[1][c]}, 0x10000, v{aB[0][c]}")
        A(f"""
        v_lshlrev_b32 v36, 9, v{vG}
        v_lshl_add_u32 v36, v47, 6, v36
        v_lshl_add_u32 v36, v48, 3, v36
        v_xor_b32 v37, s36, v49
        v_lshl_add_u32 v36, v37, 5, v36
        v_add_u32 v{aB[0][2]}, {XSL}, v36
        s_lshl_b32 s62, s63, 5
        s_sub_u32 s62, 768, s62
        """)
        cbo = [512, 576, None]
    A(f"v_lshlrev_b32 v38, 4, v{vG}")
    if kind == 'ffn3':
        A(f"""
        v_lshl_add_u32 v39, v{vS}, 6, v38
        v_add_u32 v39, 512, v39
        v_add_u32 v38, s62, v38
        v_cmp_eq_u32 vcc, 2, v{vS}
        v_cndmask_b32 v38, v39, v38, vcc
        """)
    else:
        A(f"v_lshl_add_u32 v38, v{vS}, {8 if qkv else 6}, v38")
    m = (1 << nB) - 1
    A(f"""
    s_lshl_b32 s36, s28, 4
    s_add_u32 s36, s36, s26
    s_lshl_b32 s36, s36, 10
    s_add_u32 s41, s36, s67
    s_add_u32 s41, s41, {CSP}
    s_mov_b32 s44, {m | (m << 16)}
    s_mov_b32 s45, {m | (m << 16)}
    """)
    for r in range(4): A(f"v_mov_b32 v{ON+r}, {ONESK}")
    epi_setup(A, kind, hs)
    if qkv:
        A(f"v_add_u32 v{aH[1][0]}, 0x10000, v{aH[0][0]}\nv_add_u32 v{aH[1][1]}, 0x10000, v{aH[0][1]}\nv_add_u32 v{aB[1][0]}, 0x10000, v{aB[0][0]}")
    A(f"v_mov_b32 v{vC}, {LCNT}")

    def emit(item):
        if isinstance(item, tuple):
            k, text, tag = item
            A(text); LQ.issue(tag)
        elif callable(item): item()
        else: A(item)
    def rd(op, dst, regs, off, tag):
        return ('L', f"{op} {dst}, v{regs[off >> 16]} offset:{off & 0xffff}", tag)
    def reads(s, st, hf):
        RB = []
        for j in range(nB):
            if qkv: regs = [aB[0][0], aB[1][0]]; o = QSL[st % 3] + 18*K + 1024*j + hf*12288; ts = 512
            elif kind == 'ffn4': regs = [aB[0][j], aB[1][j]]; o = QSL[st % 3] + 18*K + hf*12288; ts = 512
            elif j < 2: regs = [aB[0][j], aB[1][j]]; o = QSL[st % 3] + 18*K + 2048 + hf*12288; ts = 512
            else: regs = [aB[0][2]]; o = (st % 3) * 4096 + hf*2048; ts = 256
            RB.append([rd("ds_read_b64_tr_b16", vr(fB(s,j),2), regs, o, f"B{s}{j}"), rd("ds_read_b64_tr_b16", vr(fB(s,j)+2,2), regs, o + ts, f"B{s}{j}")])
        ab = QSL[st % 3]
        RA = [rd("ds_read_b128", vr(fA(s,i),4), [aA[0][hf], aA[1][hf]], ab + 2048*i, f"A{s}{i}") for i in range(4)]
        if qkv: RA.append(rd("ds_read_b128", vr(fA(s,4),4), [aH[0][hf], aH[1][hf]], ab, f"A{s}4"))
        out = RB[0] + RA[:4] + RB[1] + RA[4:]
        for j in range(2, nB): out += RB[j]
        return out
    def mfmas(s):
        M = []
        if qkv:
            for i in range(4): M.append((ACC+4*i, fB(s,0), fA(s,i), {f"B{s}0", f"A{s}{i}"}))
            for i in (1, 2, 3, 4, 0):
                a = 4 if i == 0 else i - 1
                M.append((ACC+4*(4+i), fB(s,1), fA(s,a), {f"B{s}1", f"A{s}{a}"}))
            for i in range(5):
                a = 4 if i == 0 else i - 1
                M.append((ACC+4*(9+i), fA(s,a), fB(s,2), {f"B{s}2", f"A{s}{a}"}))
        else:
            for j in range(nB):
                for i in range(4):
                    M.append((ACC+4*(i*nB+j), fB(s,j), fA(s,i), {f"B{s}{j}", f"A{s}{i}"}))
        return M
    def run(M, slots, first=False):
        for mi, (m, its) in enumerate(zip(M, slots)):
            d, a, b, deps = m
            G = OPTV('wgran', 1)
            if mi % G == 0:
                LQ.wait(set().union(*[mm[3] for mm in M[mi:mi+G]]))
            A(f"v_mfma_f32_16x16x32_bf16 {vr(d,4)}, {vr(a,4)}, {vr(b,4)}, {'0' if first else vr(d,4)}")
            for it in its: emit(it)
    def spread(n, items, start=0, end=None):
        end = n if end is None else end
        S = [[] for _ in range(n)]
        k = len(items); span = end - start
        for x, it in enumerate(items):
            S[start + (x * span) // max(k, 1)].append(it)
        return S
    def merge(*Ss): return [sum(parts, []) for parts in zip(*Ss)]
    def cs_mfma():
        A(f"s_cmp_lg_u32 {hs}, 0\ns_cbranch_scc1 {P}_NOCS1")
        for j in range(nB):
            A(f"v_mfma_f32_16x16x32_bf16 {vr(CSr+4*j,4)}, {vr(fB(0,j),4)}, {vr(ON,4)}, 0")
        A.label(f"{P}_NOCS1")
    def cs_store():
        A(f"s_cmp_lg_u32 {hs}, 0\ns_cbranch_scc1 {P}_NOCS2")
        for j in range(1, nB):
            A(f"v_cmp_eq_u32 vcc, {j}, v{vS}")
            for q in range(4): A(f"v_cndmask_b32 v{CSr+q}, v{CSr+q}, v{CSr+4*j+q}, vcc")
        A(f"s_mov_b64 exec, s[44:45]\nbuffer_store_dwordx4 {vr(CSr,4)}, v38, s[16:19], s41 offen sc1\ns_mov_b64 exec, -1")
        A.label(f"{P}_NOCS2")
    def sig(off): return ('L', f"v_mov_b32 v38, 1\ns_mov_b64 exec, 1\nds_add_u32 v{vC}, v38 offset:{off}\ns_mov_b64 exec, -1", 'sg')
    def pre(off, tag): return ('L', f"ds_read_b32 v{vT}, v{vC} offset:{off}", tag)
    pubst = PUBST
    def bar(st):
        A("s_waitcnt " + ("vmcnt(0) " if st == pubst else "") + "lgkmcnt(0)"); LQ.drain()
        A("s_barrier")
        stamp(A, f"bar{st}")

    A("s_barrier")
    stamp(A, 'first')
    for r in reads(0, 0, 0): emit(r)
    if PUBST == 0:
        A("s_waitcnt lgkmcnt(0)"); LQ.drain()
        cs_mfma()
    n = len(mfmas(0))
    for st in range(8):
        cnt = st > 5
        X = reads(1, st, 1)
        if cnt: X = X + [sig(oR + 4*st)]
        SX = spread(n, X, 0, n - 1 if cnt else n - 2)
        if st == 0 and PUBST == 0: SX[2] = SX[2] + [cs_store]
        run(mfmas(0), SX, first=(st == 0))
        if st == 0 and PUBST != 0: cs_mfma()
        MY = mfmas(1)
        bs = OPTV('bshift', 3) if not cnt else 0
        if bs: run(MY[:bs], [[] for _ in range(bs)])
        MY = MY[bs:]; ny = len(MY)
        if not cnt:
            bar(st)
            if st == 5 and kind == 'ffn4': A(f"s_setprio {OPTV('cprio', 1)}")
        ex = [cs_store] if (st == 0 and PUBST != 0) else []
        Y = reads(0, st + 1, 0) if st < 7 else []
        if st == 7:
            S = [[] for _ in range(ny)]; S[ny-3] = [pre(8, 'sp')]
            run(MY, S)
        else:
            if bs and Y:
                for it in Y[:2]: emit(it)
                Y = Y[2:]
            run(MY, merge(spread(ny, Y, 0, ny - 1), spread(ny, ex, 2, ny)))
    if kind == 'ffn4': A(f"s_setprio {OPTV('eprio', 0)}")
    if kind == 'ffn3': A(f"s_setprio {OPTV('hprio', 0)}")
    stamp(A, 'loop')
    chk(A, LQ, f"{P}_SSP", 'sp', vC, vT, 8, "s_cmp_lt_u32 s36, 4")
    stamp(A, 'stat')
    A(f"s_mov_b32 s60, {LOG2E | 0x80000000}\ns_mov_b32 s61, {LOG2E | 0x80000000}")
    SR4 = 72
    A(f"""
    s_lshl_b32 s36, {hs}, 10
    s_add_u32 s36, s36, {LROW}
    v_lshl_add_u32 v36, v{vS}, 4, s36
    s_add_u32 s42, s67, {LCS}
    v_lshl_add_u32 v37, v{vG}, 4, s42
    """)
    A(f"ds_read_b128 {vr(SR4,4)}, v36")
    for j in range(2 if qkv else nB):
        if cbo[j] is not None: A(f"ds_read_b128 {vr(CSr+4*j,4)}, v37 offset:{cbo[j]}")
        else: A(f"v_add_u32 v38, s62, v37\nds_read_b128 {vr(CSr+4*j,4)}, v38")
    for i in range(1, 4): A(f"ds_read_b128 {vr(SR4+4*i,4)}, v36 offset:{256*i}")
    if qkv:
        qkv_epilogue(A, ACC, SR4, CSr)
        A("s_branch L_P2")
        return
    if kind == 'ffn4' and OPT('lonopk'): A.nopk = lambda ins: True
    A("s_waitcnt lgkmcnt(0)")
    for i in range(4): A(f"v_pk_mul_f32 {vr(SR4+4*i+2,2)}, s[60:61], {vr(SR4+4*i+2,2)}")
    TM = 40; SP = 56
    deferred = []
    for i in range(4):
        st = SR4 + 4*i
        for j in range(nB):
            a = ACC + 4*(i*nB+j); t = TM + 4*j
            for q in (0, 2): A(f"v_pk_fma_f32 {vr(a+q,2)}, {vr(CSr+4*j+q,2)}, {vr(st,2)}, {vr(a+q,2)}")
            for q in (0, 2): A(f"v_pk_mul_f32 {vr(a+q,2)}, {vr(a+q,2)}, {vr(st+2,2)}")
            for q in range(4): A(f"v_exp_f32 v{t+q}, v{a+q}")
        for j in range(nB):
            t = TM + 4*j
            for q in (0, 2): A(f"v_pk_fma_f32 {vr(t+q,2)}, {vr(t+q,2)}, s[60:61], s[60:61]")
            for q in range(4): A(f"v_rcp_f32 v{t+q}, v{t+q}")
        for j in range(nB):
            a = ACC + 4*(i*nB+j); t = TM + 4*j
            for q in (0, 2): A(f"v_pk_mul_f32 {vr(t+q,2)}, {vr(a+q,2)}, {vr(t+q,2)}")
        base = ACC + 4*(i*nB)
        for j in range(nB):
            t = TM + 4*j
            d = base + 2*j if not (kind == 'ffn3' and j == 2) else SP + 4*(i//2) + 2*(i%2)
            A(f"v_cvt_pk_bf16_f32 v{d}, v{t}, v{t+1}\nv_cvt_pk_bf16_f32 v{d+1}, v{t+2}, v{t+3}")
        def st_i(i=i, base=base):
            A(f"buffer_store_dwordx4 {vr(base,4)}, v{vL16}, s[16:19], s51 offen sc1")
            if kind == 'ffn4':
                A(f"buffer_store_dwordx4 {vr(base+4,4)}, v{vL16}, s[16:19], s51 offen offset:1024 sc1")
            elif i % 2 == 1:
                d = SP + 4*(i//2)
                A(f"v_permlane16_swap_b32 v{d}, v{d+2}\nv_permlane16_swap_b32 v{d+1}, v{d+3}")
                A(f"buffer_store_dwordx4 {vr(d,4)}, v10, s[16:19], s52 offen sc1\ns_add_u32 s52, s52, {2*72*1024}")
            A(f"s_add_u32 s51, s51, {72*1024}")
        if OPTV('defer', 0) & (1 if kind == 'ffn4' else 2): deferred.append(st_i)
        else: st_i()
    for f in deferred: f()
    A.nopk = lambda ins: 'op_sel' in ins.mods
    if kind == 'ffn4': A("s_branch L_P2")

def epi_setup(A, kind, hs):
    qkv = kind == 'qkv'
    A(f"""
    s_lshl_b32 s43, s26, 1
    s_add_u32 s43, s43, {hs}
    s_mul_i32 s43, s43, {4*72*1024}
    """)
    if kind != 'ffn4':
        A(f"""
        v_and_b32 v10, 1, v{vG}
        v_lshrrev_b32 v11, 1, v{vG}
        v_lshlrev_b32 v39, 4, v{vS}
        v_lshl_add_u32 v39, v11, 8, v39
        v_mul_u32_u24 v10, {72*1024}, v10
        v_add_u32 v10, v10, v39
        """)
    if qkv:
        A(f"""
        s_lshl_b32 s51, s28, 1
        s_lshr_b32 s52, s32, 1
        s_add_u32 s51, s51, s52
        s_lshl_b32 s51, s51, 10
        s_add_u32 s51, s51, s43
        s_lshl_b32 s52, s35, 9
        s_add_u32 s51, s51, s52
        v_lshlrev_b32 v36, 2, v{vG}
        v_sub_u32 v36, v{vS}, v36
        s_mov_b32 s52, 0xf149f2ca
        v_mov_b32 v37, s52
        """)
        BC = 160; BP = 164; MC = 34; TMP = 50
        for r in range(4):
            A(f"""
            v_subrev_u32 v39, {r}, v36
            v_cmp_gt_u32 vcc, 8, v39
            v_cndmask_b32_e64 v{BC+r}, v37, 0, vcc
            v_cmp_gt_i32 vcc, -8, v39
            v_cndmask_b32_e64 v{BP+r}, v37, 0, vcc
            v_cmp_le_i32 vcc, 0, v39
            v_cndmask_b32_e64 v{TMP+r}, 0, -1, vcc
            """)
        A(f"""
        s_mov_b32 s36, 0xffff
        v_bfi_b32 v{MC}, s36, v{TMP}, v{TMP+1}
        v_bfi_b32 v{MC+1}, s36, v{TMP+2}, v{TMP+3}
        s_cmp_eq_u32 s26, 0
        s_cselect_b32 s52, s52, 0
        """)
        for r in range(4): A(f"v_min_f32 v{28+r}, s52, v{BP+r}")
    else:
        A(f"""
        s_mul_i32 s51, s37, 7
        s_add_u32 s51, s51, 16
        s_cmp_eq_u32 s39, 0
        s_cselect_b32 s52, 6, 0
        s_add_u32 s52, s52, s51
        s_add_u32 s51, s51, s39
        """)
        if kind == 'ffn4':
            A("s_and_b32 s36, s3, 2\ns_add_u32 s51, s51, s36")
        else:
            A("s_lshr_b32 s36, s63, 1\ns_add_u32 s51, s51, s36\ns_add_u32 s51, s51, 4")
            A("s_lshl_b32 s52, s52, 10\ns_add_u32 s52, s52, s43\ns_lshl_b32 s36, s36, 9\ns_add_u32 s52, s52, s36")
        A(f"s_lshl_b32 s51, s51, 10\ns_add_u32 s51, s51, s43")

def qkv_epilogue(A, ACC, SR, CR):
    BC = 160; BP = 164; BP0 = 28; MC = 34; ONES = 24
    QP = 92; KPr = [4, 6, 8, 100, 102]
    VS = [(36, 20), (40, 44), (48, 52), (56, 60), (64, 68)]
    CV = 32
    A(f"""
    v_and_b32 v4, 7, v{vS}
    s_lshl_b32 s36, s31, 7
    s_add_u32 s36, s36, {LROW + 2048}
    v_lshl_add_u32 v4, v4, 4, s36
    ds_read_b128 {vr(SR+16,4)}, v4
    v_lshl_add_u32 v5, v{vS}, 2, s42
    ds_read_b32 v{CV}, v5 offset:512
    ds_read_b32 v{CV+1}, v5 offset:512
    s_lshl_b32 s36, s31, 8
    s_add_u32 s36, s36, {LSM}
    v_lshl_add_u32 v6, v{vG}, 4, s36
    s_lshl_b32 s36, s31, 5
    s_add_u32 s36, s36, {LSM + 512}
    v_and_b32 v7, 16, v0
    v_add_u32 v7, s36, v7
    s_waitcnt lgkmcnt(3)
    """)
    def corr_sw(a, st, cs, dst):
        for q in (0, 2): A(f"v_pk_fma_f32 {vr(a+q,2)}, {vr(cs+q,2)}, {vr(st,2)}, {vr(a+q,2)}")
        for q in (0, 2): A(f"v_pk_mul_f32 {vr(a+q,2)}, {vr(a+q,2)}, {vr(st+2,2)}")
        A(f"v_cvt_pk_bf16_f32 v{dst}, v{a}, v{a+1}\nv_cvt_pk_bf16_f32 v{dst+1}, v{a+2}, v{a+3}")
    for i in range(4):
        A(f"ds_read_b128 {vr(VS[i+1][0],4)}, v6 offset:{64*i}\nds_read_b128 {vr(VS[i+1][1],4)}, v6 offset:{64*i+576}")
    A(f"ds_read_b128 {vr(VS[0][0],4)}, v7\nds_read_b128 {vr(VS[0][1],4)}, v7 offset:576")
    for i in range(4): corr_sw(ACC + 4*i, SR + 4*i, CR, QP + 2*i)
    A("s_waitcnt lgkmcnt(10)")
    for i in range(5): corr_sw(ACC + 4*(4+i), SR + (16 if i == 0 else 4*(i-1)), CR + 4, KPr[i])
    for b in range(4):
        A(f"v_mfma_f32_16x16x16_bf16 {vr(ACC+8*b,4)}, {vr(KPr[b+1],2)}, {vr(QP+2*b,2)}, {vr(BC,4)}")
        A(f"v_mfma_f32_16x16x16_bf16 {vr(ACC+8*b+4,4)}, {vr(KPr[b],2)}, {vr(QP+2*b,2)}, {vr(BP0 if b == 0 else BP,4)}")
    VP = SR
    A("s_waitcnt lgkmcnt(0)")
    for i in range(5):
        a = ACC + 4*(9+i); vm, vs = VS[i]
        for q in (0, 2): A(f"v_pk_fma_f32 {vr(a+q,2)}, {vr(vm+q,2)}, {vr(CV,2)}, {vr(a+q,2)}")
        for q in (0, 2): A(f"v_pk_mul_f32 {vr(a+q,2)}, {vr(a+q,2)}, {vr(vs+q,2)}")
        A(f"v_cvt_pk_bf16_f32 v{VP+2*i}, v{a}, v{a+1}\nv_cvt_pk_bf16_f32 v{VP+2*i+1}, v{a+2}, v{a+3}")
    MX = 12
    A(f"s_mov_b32 s60, 0x3eb8aa3b")
    for b in range(4):
        c = ACC + 8*b
        for r in range(4): A(f"v_max_f32 v{c+r}, v{c+r}, v{c+4+r}")
    for b in range(4): A(f"v_max3_f32 v{MX+b}, v{ACC+8*b}, v{ACC+8*b+1}, v{ACC+8*b+2}")
    for b in range(4): A(f"v_max_f32 v{MX+b}, v{MX+b}, v{ACC+8*b+3}")
    A(f"""
    v_permlane32_swap_b32 v{MX}, v{MX+1}
    v_permlane32_swap_b32 v{MX+2}, v{MX+3}
    v_max_f32 v{MX}, v{MX}, v{MX+1}
    v_max_f32 v{MX+2}, v{MX+2}, v{MX+3}
    v_permlane16_swap_b32 v{MX}, v{MX+2}
    v_max_f32 v{MX}, v{MX}, v{MX+2}
    v_mul_f32 v{MX}, s60, v{MX}
    v_mov_b32 v{MX+2}, v{MX}
    v_permlane16_swap_b32 v{MX}, v{MX+2}
    v_mov_b32 v{MX+1}, v{MX}
    v_mov_b32 v{MX+3}, v{MX+2}
    v_permlane32_swap_b32 v{MX}, v{MX+1}
    v_permlane32_swap_b32 v{MX+2}, v{MX+3}
    """)
    for b in range(4):
        c = ACC + 8*b
        for r in range(4): A(f"v_fma_f32 v{c+r}, v{c+r}, s60, -v{MX+b}")
        for r in range(4): A(f"v_exp_f32 v{c+r}, v{c+r}")
    for b in range(4):
        c = ACC + 8*b
        A(f"""
        v_cvt_pk_bf16_f32 v{c}, v{c}, v{c+1}
        v_cvt_pk_bf16_f32 v{c+1}, v{c+2}, v{c+3}
        v_bfi_b32 v{c+4}, v{MC}, 0, v{c}
        v_bfi_b32 v{c+5}, v{MC+1}, 0, v{c+1}
        v_and_b32 v{c+6}, v{MC}, v{c}
        v_and_b32 v{c+7}, v{MC+1}, v{c+1}
        """)
    OD = 136
    for b in range(4):
        c = ACC + 8*b
        A(f"v_mfma_f32_16x16x32_bf16 {vr(OD+8*b+4,4)}, {vr(ONES,4)}, {vr(c+4,4)}, 0")
        A(f"v_mfma_f32_16x16x32_bf16 {vr(OD+8*b,4)}, {vr(VP+2*b,4)}, {vr(c+4,4)}, 0")
    for b in range(4): A(f"v_rcp_f32 v{OD+8*b+4}, v{OD+8*b+4}")
    PK = ACC
    for b in range(4):
        o = OD + 8*b
        for q in range(4): A(f"v_mul_f32 v{o+q}, v{o+q}, v{o+4}")
        A(f"v_cvt_pk_bf16_f32 v{PK+2*b}, v{o}, v{o+1}\nv_cvt_pk_bf16_f32 v{PK+2*b+1}, v{o+2}, v{o+3}")
        if b % 2 == 1:
            d = PK + 2*(b-1)
            A(f"v_permlane16_swap_b32 v{d}, v{d+2}\nv_permlane16_swap_b32 v{d+1}, v{d+3}")
            A(f"buffer_store_dwordx4 {vr(d,4)}, v10, s[16:19], s51 offen sc1\ns_add_u32 s51, s51, {2*72*1024}")

NRING = OPTV('nring', 4); NBF = OPTV('nbf', 3)
def phase2(A):
    A.label("L_P2"); A.reset_hist()
    A("s_nop 1")
    stamp(A, 'epi')
    VQ = Q(A, 'vmcnt', 63); LQ = Q(A, 'lgkmcnt', 15)
    RA = 4; vAo = [16, 17]; vOut = 18; XR = 160; ACC = 24; BF = [56 + 16*i for i in range(NBF)]; AF = 56 + 16*NBF
    assert AF + 8*NRING <= XR
    vFr, vFv, vSy, vSv = 20, 21, 22, 23
    A(f"""
    v_bfe_u32 v24, v0, 2, 3
    v_lshrrev_b32 v25, 1, v24
    v_lshrrev_b32 v26, 5, v0
    v_lshlrev_b32 v26, 10, v26
    v_lshl_add_u32 v26, v24, 7, v26
    v_and_b32 v27, 3, v0
    v_lshl_add_u32 v26, v27, 3, v26
    s_lshl_b32 s36, s32, 12
    v_add_u32 v26, s36, v26
    """)
    for c in range(4):
        A(f"""
        s_add_u32 s36, s32, {c}
        s_and_b32 s36, s36, 3
        v_xor_b32 v27, s36, v25
        v_lshl_add_u32 v{RA+c}, v27, 5, v26
        v_add_u32 v{RA+4+c}, 0x10000, v{RA+c}
        v_add_u32 v{RA+8+c}, 0x20000, v{RA+c}
        """)
    A(f"""
    s_lshl_b32 s36, s48, 2
    s_lshl_b32 s42, s31, 1
    s_add_u32 s36, s36, s42
    s_mul_i32 s36, s36, {72*1024}
    v_add_u32 v{vAo[0]}, s36, v{vL16}
    v_add_u32 v{vAo[1]}, {72*1024}, v{vAo[0]}
    s_lshr_b32 s41, s48, 1
    s_lshl_b32 s36, s41, 7
    s_lshl_b32 s42, s31, 6
    s_add_u32 s36, s36, s42
    s_and_b32 s43, s48, 1
    s_add_u32 s36, s36, s43
    s_lshl_b32 s36, s36, 10
    s_lshl_b32 s42, s49, 7
    s_add_u32 s36, s36, s42
    s_lshl_b32 s42, s32, 5
    s_add_u32 s36, s36, s42
    v_lshlrev_b32 v{vOut}, 11, v{vS}
    v_lshl_add_u32 v{vOut}, v{vG}, 3, v{vOut}
    v_add_u32 v{vOut}, s36, v{vOut}
    v_add_u32 v{vOut+1}, 0x8000, v{vOut}
    s_lshl_b32 s36, s31, 2
    v_mov_b32 v26, s36
    v_add_u32 v24, {LCNT}, v26
    v_mov_b32 v25, 1
    s_lshl_b32 s57, s32, 3
    s_add_u32 s57, s57, s36
    s_add_u32 s57, s57, {LCNT + oFREE}
    v_mov_b32 v{vFr}, s57
    s_lshl_b32 s36, s32, 2
    s_add_u32 s36, s36, {LCNT + oFULL}
    v_mov_b32 v{vSy}, s36
    """)
    p2_masks(A)
    A("v_mov_b32 v164, v26\nv_mov_b32 v165, v24\ns_mov_b32 s61, 0\ns_setprio 0")
    SIG = lambda L: f"""
    s_mov_b32 s61, 1
    v_mov_b32 v166, 1
    s_mov_b64 exec, 1
    ds_add_rtn_u32 v167, v165, v166
    s_waitcnt lgkmcnt(0)
    v_readfirstlane_b32 s36, v167
    s_cmp_lg_u32 s36, 3
    s_cbranch_scc1 {L}
    buffer_store_dword v166, v164, s[16:19], s66 offen sc1
    {L}:
    s_mov_b64 exec, -1
    """
    def emit_text(t):
        for ln in t.strip().split('\n'):
            ln = ln.strip()
            if ln.endswith(':'): A.label(ln[:-1])
            elif ln: A(ln)
    if OPT('sigearly'):
        A("s_waitcnt vmcnt(0)"); emit_text(SIG("P2_NF0"))
    stamp(A, 'flag')
    def seen_pre(): A(f"ds_read_b32 v3, v{vSy} offset:{oSEEN-oFULL}"); LQ.issue('se')
    A(f"v_lshlrev_b32 v0, 7, v{vS}\nv_lshl_add_u32 v0, v{vG}, 2, v0\nv_mov_b32 v2, 0\ns_mov_b32 s45, 0")
    def gate_chk(mask, lab):
        LQ.wait('se')
        A(f"""
        v_readfirstlane_b32 s36, v3
        s_or_b32 s45, s45, s36
        s_and_b32 s36, s45, {mask}
        s_cmp_lg_u32 s36, {mask}
        s_cbranch_scc1 {lab}
        """)
        A.label(f"{lab}_OK")
        pre = "" if (lab != "P2_G0" or OPT('sigearly')) else "s_waitcnt vmcnt(0)\n" + SIG("P2_NF1")
        if OPT('ldsgate'):
            cold(lab, f"""
            {pre}
            s_mov_b32 s60, 0
            {lab}_L:
            s_sleep 1
            ds_read_b32 v3, v{vSy} offset:{oSEEN-oFULL}
            s_add_u32 s60, s60, 1
            s_cmp_ge_u32 s60, {SPIN*4}
            s_cbranch_scc1 {lab}_OK
            s_waitcnt lgkmcnt(0)
            v_readfirstlane_b32 s45, v3
            s_and_b32 s36, s45, {mask}
            s_cmp_eq_u32 s36, {mask}
            s_cbranch_scc1 {lab}_OK
            s_branch {lab}_L
            """)
            return
        cold(lab, f"""
        {pre}
        s_mov_b32 s60, 0
        {lab}_L:
        s_mov_b64 exec, s[46:47]
        buffer_load_dword v2, v0, s[16:19], s41 offen sc1
        s_mov_b64 exec, -1
        s_add_u32 s60, s60, 1
        s_cmp_ge_u32 s60, {SPIN}
        s_cbranch_scc1 {lab}_OK
        s_waitcnt vmcnt(0)
        v_cmp_eq_u32 vcc, 1, v2
        s_nop 0
        s_or_b32 s45, s45, vcc_lo
        s_and_b32 s36, s45, {mask}
        s_cmp_eq_u32 s36, {mask}
        s_cbranch_scc1 {lab}_OK
        s_sleep {OPTV('psleep', 2)}
        s_branch {lab}_L
        """)
    def full_pre(): A(f"ds_read_b32 v{vSv}, v{vSy}"); LQ.issue('fu')
    def full_chk(tgt): chk(A, LQ, f"P2_FULL{tgt}", 'fu', vSy, vSv, 0, f"s_cmp_lt_u32 s36, {tgt}")
    def areg(pos): return AF + 8 * (pos % NRING)
    def aload(pos):
        return [('V', f"buffer_load_dwordx4 {vr(areg(pos)+4*b,4)}, v{vAo[b]}, s[16:19], s{ATAB[pos]} offen sc1", f"a{pos}") for b in range(2)]
    def emit(item):
        if isinstance(item, tuple):
            k, text, tag = item; A(text); (VQ if k == 'V' else LQ).issue(tag)
        elif callable(item): item()
        else: A(item)
    def breads(pos):
        s = pos % NBF; area = (pos % 9) * BLK
        R = []
        for c in range(4):
            for t in range(2):
                st, oo = (area + t * 2048) >> 16, (area + t * 2048) & 0xffff
                R.append(('L', f"ds_read_b64_tr_b16 {vr(BF[s]+4*c+2*t,2)}, v{RA+4*st+c} offset:{oo}", f"b{pos}_{c}"))
        if pos <= 8 or pos == 11:
            R.append(('L', f"v_mov_b32 v{vFv}, {pos+1}\nds_write_b32 v{vFr}, v{vFv}", 'fr'))
        return R
    def stepwait(pos, more=()):
        w = [x for x in (VQ.wait_str(f"a{pos}"), LQ.wait_str({f"b{pos}_{c}" for c in range(4)} | set(more))) if x]
        if w: A("s_waitcnt " + " ".join(w))
    def step(pos, extra):
        s = pos % NBF
        k = 0
        for c in range(4):
            for b in range(2):
                a = ACC + 4*(c*2+b)
                A(f"v_mfma_f32_16x16x32_bf16 {vr(a,4)}, {vr(BF[s]+4*c,4)}, {vr(areg(pos)+4*b,4)}, {'0' if pos == 0 else vr(a,4)}")
                tgt = (len(extra) * (c*2+b+1) + 7) // 8
                while k < tgt: emit(extra[k]); k += 1
    def full_fast(tgt):
        lab = f"P2_FULL{tgt}"
        A(f"s_cmp_lt_u32 s59, {tgt}\ns_cbranch_scc1 {lab}")
        A.label(f"{lab}_OK")
        cold(lab, f"""
        s_mov_b32 s60, 0
        {lab}_L:
        ds_read_b32 v{vSv}, v{vSy}
        s_add_u32 s60, s60, 1
        s_cmp_ge_u32 s60, {SPIN*4}
        s_cbranch_scc1 {lab}_OK
        s_waitcnt lgkmcnt(0)
        v_readfirstlane_b32 s59, v{vSv}
        s_cmp_ge_u32 s59, {tgt}
        s_cbranch_scc1 {lab}_OK
        s_sleep 1
        s_branch {lab}_L
        """)
    LA = NBF - 1
    if OPT('dbgquiet'):
        A.label("DBGQ")
        A("s_sleep 4\ns_memrealtime s[22:23]\ns_waitcnt lgkmcnt(0)\ns_sub_u32 s22, s22, s80\ns_cmp_lt_u32 s22, 1600\ns_cbranch_scc1 DBGQ")
    A("s_mov_b32 s59, 0")
    def bpre():
        full_fast(LA)
        for p in range(LA):
            for r in breads(p): emit(r)
    if OPT('bfirst'): bpre()
    seen_pre(); gate_chk('s42' if ORDER == 2 else 's43', "P2_G0")
    stamp(A, 'poll0')
    issued = min(4, NRING)
    NI = OPTV('nimm', 2)
    for p in range(NI):
        for g in aload(p): emit(g)
    if not OPT('sigearly'):
        A(f"s_cmp_lg_u32 s61, 0\ns_cbranch_scc1 P2_SIGD\ns_waitcnt vmcnt({2*NI})")
        emit_text(SIG("P2_NF2"))
        A.label("P2_SIGD")
        VQ.issue('fl', sure=False)
    for p in range(NI, issued):
        for g in aload(p): emit(g)
    if not OPT('bfirst'): bpre()
    gate = {0: {4: 's62', 8: 's56', 14: 's42'}, 1: {4: 's62', 8: 's42', 12: 's56'}, 2: {4: 's43', 8: 's62', 12: 's56'}}[ORDER]
    gstep = {g: max(g - NRING + 1, 0) for g in gate}
    if 0 in gstep.values(): seen_pre()
    pr = {0: {}, 2: {0: 3, 4: 2, 8: 1, 12: 0}, 1: {0: 2, 5: 1, 10: 0}}[OPTV('pprio', 2)]
    RF = OPTV('refresh', 2)
    refreshed = False
    for pos in range(18):
        ex = []
        if pos in pr: A(f"s_setprio {pr[pos]}")
        stamp(A, f"p{pos}")
        stepwait(pos, ['fu'] if refreshed else [])
        head = []
        if refreshed: head.append(f"v_readfirstlane_b32 s59, v{vSv}"); refreshed = False
        lim = min(pos + NRING, 18)
        while issued < lim:
            if issued in gate:
                assert pos == gstep[issued] and not ex, (pos, issued)
                ex.append(lambda g=issued: gate_chk(gate[g], f"P2_G{g}"))
            ex += aload(issued); issued += 1
        nxt = []
        if pos + LA < 18:
            nxt = [lambda t=pos + LA + 1: full_fast(t)]
            if pos % RF == RF - 1 and pos + LA + 1 < 18: nxt.append(full_pre); refreshed = True
            if pos + 1 in gstep.values(): nxt.append(seen_pre)
            nxt += breads(pos + LA)
        if pos == 15:
            ex += [('V', f"buffer_load_dwordx2 {vr(XR,2)}, v{vOut}, s[8:11], 0 offen", 'x'), ('V', f"buffer_load_dwordx2 {vr(XR+2,2)}, v{vOut+1}, s[8:11], 0 offen", 'x')]
        if pos == 16:
            nxt = nxt + [('L', f"s_xor_b32 s36, s57, 4\nv_mov_b32 v2, s36\nds_read_b32 v3, v2", 'pf')]
        mix = list(head)
        for kk in range(max(len(nxt), len(ex))):
            if kk < len(nxt): mix.append(nxt[kk])
            if kk < len(ex): mix.append(ex[kk])
        step(pos, mix)
    stamp(A, 'p2loop')
    chk(A, LQ, "P2_PART", 'pf', 2, 3, 0, "s_cmp_lt_u32 s36, 12")
    A(f"""
    s_lshl_b32 s36, s32, 1
    s_add_u32 s36, s36, s31
    s_lshl_b32 s36, s36, 11
    v_add_u32 v4, s36, v{vL16}
    """)
    for c in (1, 2, 3):
        A(f"ds_write_b128 v4, {vr(ACC+8*c,4)} offset:{(c-1)*BLK}\nds_write_b128 v4, {vr(ACC+8*c+4,4)} offset:{(c-1)*BLK+1024}")
    for c in (1, 2, 3):
        A(f"""
        s_sub_u32 s36, s32, {c}
        s_and_b32 s36, s36, 3
        s_lshl_b32 s36, s36, 1
        s_add_u32 s36, s36, s31
        s_lshl_b32 s36, s36, 11
        v_add_u32 v{5+c}, s36, v{vL16}
        """)
    A("s_mov_b32 s8, s68\ns_mov_b32 s9, s69\ns_waitcnt vmcnt(0)")
    for b in range(2):
        for q in range(2):
            x = XR + 2*b + q; a = ACC + 4*b + 2*q
            A(f"v_lshlrev_b32 v10, 16, v{x}\nv_and_b32 v11, 0xffff0000, v{x}\nv_add_f32 v{a}, v{a}, v10\nv_add_f32 v{a+1}, v{a+1}, v11")
    A("s_waitcnt lgkmcnt(0)\ns_barrier")
    for c in (1, 2, 3):
        A(f"ds_read_b128 {vr(BF[0]+8*(c-1),4)}, v{5+c} offset:{(c-1)*BLK}\nds_read_b128 {vr(BF[0]+8*(c-1)+4,4)}, v{5+c} offset:{(c-1)*BLK+1024}")
    A("s_waitcnt lgkmcnt(0)")
    for b in range(2):
        for q in range(2):
            a = ACC + 4*b + 2*q; r = BF[0] + 4*b + 2*q
            A(f"""
            v_pk_add_f32 {vr(r,2)}, {vr(r,2)}, {vr(r+8,2)}
            v_pk_add_f32 {vr(a,2)}, {vr(a,2)}, {vr(r+16,2)}
            v_pk_add_f32 {vr(a,2)}, {vr(a,2)}, {vr(r,2)}
            v_cvt_pk_bf16_f32 v{XR+2*b+q}, v{a}, v{a+1}
            """)
        A(f"buffer_store_dwordx2 {vr(XR+2*b,2)}, v{vOut+b}, s[8:11], 0 offen")
    if STAMP:
        A("s_waitcnt vmcnt(0)")
        stamp(A, 'end')
        stamp_out(A, 's3', STAMPS)
    A.label("L_END")
    A("s_endpgm")

vA0, vA1, vBe, vBo, vX = 4, 5, 6, 7, 8
vBn, vBp = 10, 11
STG = 24
def loader(A):
    RW = STG + 128
    if OPTV('lprio', 3): A(f"s_setprio {OPTV('lprio', 3)}")
    A(f"""
    s_and_b32 s30, s27, 3
    s_lshl_b32 s30, s30, 1
    s_add_u32 s30, s30, s36
    s_add_u32 s30, s30, s37
    s_lshl_b32 s38, s38, 2
    s_add_u32 s30, s30, s38
    s_and_b32 s30, s30, 7
    s_lshr_b32 s33, s27, 2
    v_lshrrev_b32 v14, 3, v0
    v_and_b32 v15, 7, v0
    v_lshrrev_b32 v16, 1, v14
    v_xor_b32 v17, v15, v16
    v_lshlrev_b32 v17, 4, v17
    s_lshl_b32 s41, s33, 6
    v_xor_b32 v17, s41, v17
    s_and_b32 s36, s32, 1
    s_lshl_b32 s36, s36, 6
    s_add_u32 s36, s36, s34
    s_lshr_b32 s43, s32, 1
    s_add_u32 s36, s36, s43
    s_lshl_b32 s36, s36, 10
    v_lshlrev_b32 v18, 11, v14
    v_add3_u32 v{vA0}, v18, v17, s36
    v_xor_b32 v{vA1}, 64, v{vA0}
    v_add_u32 v{vA1}, 0x4000, v{vA1}
    v_bfe_u32 v19, v0, 1, 2
    v_and_b32 v20, 1, v16
    v_xor_b32 v19, v19, v20
    v_lshlrev_b32 v19, 5, v19
    v_and_b32 v21, 1, v0
    v_lshl_or_b32 v19, v21, 4, v19
    s_lshl_b32 s36, s33, 1
    s_xor_b32 s42, s36, s32
    s_lshl_b32 s42, s42, 4
    v_add_u32 v20, s42, v14
    s_lshl_b32 s44, s32, 12
    s_mov_b32 s15, 0x20000
    s_lshl_b32 s67, s28, 3
    s_lshl_b32 s36, s32, 1
    s_add_u32 s67, s67, s36
    s_and_b32 s66, s67, 63
    s_lshl_b32 s66, s66, 1
    s_lshr_b32 s36, s67, 6
    s_add_u32 s66, s66, s36
    s_add_u32 s66, s66, s34
    s_lshl_b32 s66, s66, 10
    s_add_u32 s67, s67, s34
    v_lshrrev_b32 v23, 5, v0
    v_and_b32 v9, 0x1f0, v{vL16}
    v_lshl_add_u32 v9, v23, 11, v9
    s_cmp_lt_u32 s28, 8
    s_cbranch_scc1 LD_QKV
    """)
    A(f"""
    s_sub_u32 s37, s28, 8
    s_mul_i32 s38, s37, 448
    s_and_b32 s39, s37, 1
    s_lshl_b32 s46, s39, 6
    s_add_u32 s46, s46, s38
    s_cmp_eq_u32 s39, 0
    s_cselect_b32 s47, 384, 0
    s_add_u32 s47, s47, s38
    v_mul_u32_u24 v{vBe}, 3584, v20
    v_add3_u32 v{vBe}, v{vBe}, v19, s46
    v_xor_b32 v{vBo}, 64, v{vBe}
    v_add_u32 v{vBo}, {8*3584}, v{vBo}
    v_lshrrev_b32 v20, 2, v0
    v_add_u32 v20, s42, v20
    v_mul_u32_u24 v20, 3584, v20
    v_bfe_u32 v22, v0, 1, 1
    v_xor_b32 v22, v22, v23
    v_lshlrev_b32 v22, 5, v22
    v_lshl_or_b32 v22, v21, 4, v22
    v_add3_u32 v{vX}, v20, v22, s47
    s_mul_i32 s45, s32, 6144
    s_lshl_b32 s46, s32, 10
    s_mov_b32 s14, {512*3584}
    s_waitcnt lgkmcnt(0)
    s_mov_b32 s8, s4
    s_mov_b32 s9, s5
    s_mov_b32 s12, s20
    s_mov_b32 s13, s21
    """)
    loader_body(A, False)
    A.label("LD_QKV"); A.reset_hist()
    A(f"""
    s_lshl_b32 s36, s28, 7
    v_mul_u32_u24 v{vBe}, 3072, v20
    v_add3_u32 v{vBe}, v{vBe}, v19, s36
    v_xor_b32 v{vBo}, 64, v{vBe}
    v_add_u32 v{vBo}, {8*3072}, v{vBo}
    s_lshl_b32 s36, s32, 2
    v_add_u32 v20, s36, v14
    v_lshrrev_b32 v22, 1, v20
    v_xor_b32 v22, v15, v22
    v_and_b32 v22, 7, v22
    v_lshlrev_b32 v22, 4, v22
    v_xor_b32 v22, s41, v22
    v_and_b32 v20, 7, v20
    v_lshl_add_u32 v22, v20, 11, v22
    s_add_u32 s36, s43, s34
    s_sub_u32 s36, s36, 16
    s_lshl_b32 s36, s36, 10
    v_add_u32 v{vX}, s36, v22
    s_mul_i32 s45, s32, 6144
    s_lshl_b32 s46, s32, 9
    s_mov_b32 s14, {512*3072}
    s_waitcnt lgkmcnt(0)
    s_mov_b32 s8, s4
    s_mov_b32 s9, s5
    s_mov_b32 s12, s6
    s_mov_b32 s13, s7
    """)
    loader_body(A, True)

def loader_body(A, qkv):
    P = 'LQ' if qkv else 'LF'
    VQ = Q(A, 'vmcnt', 63)
    RW = STG + 128
    stride = 3072 if qkv else 3584
    lstamp(A, 'lstart')
    def ld(m0, v, srd, so, tag, imm=0):
        A(f"{m0}\nbuffer_load_dwordx4 v{v}, {srd}, {so} offen{f' offset:{imm}' if imm else ''} lds"); VQ.issue(tag)
    def kcalc(st):
        A(f"s_add_u32 s31, s30, {st}\ns_and_b32 s31, s31, 7\ns_lshl_b32 s61, s31, 7\ns_mul_i32 s62, s31, {64*stride}\ns_add_u32 s63, s61, 0x8000")
    def w2(st, base, tag):
        ld(f"s_add_u32 m0, s45, {base - 256}", vBe, 's[12:15]', 's62', tag, 256)
        ld(f"s_add_u32 m0, s45, {base + 1024 - 256}", vBo, 's[12:15]', 's62', tag, 256)
        ld(f"s_add_u32 m0, s46, {base + 8192}", vX, 's[12:15]', 's62', tag)
    def dma(st, x=True, w=True):
        t = f"st{st}"
        kcalc(st)
        ab = QSL[st % 3]
        AL = [(f"s_add_u32 m0, s44, {ab + 1024*u}", v, 's[8:11]', so, t) for u, (v, so) in enumerate(((vA0, 's61'), (vA1, 's61'), (vA0, 's63'), (vA1, 's63')))]
        bb = ab + 18*K
        if qkv:
            BL = [(f"s_add_u32 m0, s45, {bb + 3072*o}", v, 's[12:15]', 's62', t, 1024*a) for o, v in enumerate((vBe, vBo)) for a in range(3)]
        else:
            BL = [(f"s_add_u32 m0, s45, {bb + 3072*o + (1024-128)*a}", v, 's[12:15]', 's62', t, 128*a) for o, v in enumerate((vBe, vBo)) for a in range(3)]
        for i in range(max(len(AL), len(BL))):
            if i < len(AL): ld(*AL[i])
            if i < len(BL): ld(*BL[i])
        if qkv:
            A(f"s_add_u32 m0, s46, {ab + 16384}\ns_mov_b32 exec_hi, 0\nbuffer_load_dwordx4 v{vX}, s[8:11], s61 offen lds\ns_mov_b32 exec_hi, -1"); VQ.issue(t)
        else:
            ld(f"s_add_u32 m0, s46, {XSL + (st % 3)*4096}", vX, 's[12:15]', 's62', t)
    dma(0)
    A(f"""
    buffer_load_dwordx4 {vr(RW,4)}, v9, s[8:11], s66 offen
    buffer_load_dwordx4 {vr(RW+4,4)}, v9, s[8:11], s66 offen offset:512
    """)
    VQ.issue('row'); VQ.issue('row')
    p2_sgprs(A)
    A(f"""
    s_mov_b32 s72, s64
    s_mov_b32 s73, s65
    s_mov_b32 s74, {512*1024}
    s_mov_b32 s75, 0x20000
    s_mov_b32 s76, s22
    s_mov_b32 s77, s23
    s_mov_b32 s78, {1792*1024}
    s_mov_b32 s79, 0x20000
    v_bfe_u32 v20, v0, 1, 2
    v_lshrrev_b32 v22, 4, v0
    v_xor_b32 v20, v20, v22
    v_lshlrev_b32 v20, 5, v20
    v_lshl_or_b32 v20, v21, 4, v20
    s_lshl_b32 s36, s49, 7
    v_add_u32 v20, s36, v20
    v_lshl_add_u32 v{vBp}, v14, 10, v20
    v_lshl_add_u32 v{vBn}, v23, 12, v{vBp}
    v_add_u32 v9, s44, v{vL16}
    v_mov_b32 v16, 0
    v_mov_b32 v17, 0
    v_lshlrev_b32 v20, 2, v0
    v_add_u32 v20, {LCNT}, v20
    ds_write_b32 v20, v16
    v_mov_b32 v21, {LCNT}
    s_lshl_b32 s36, s32, 3
    s_add_u32 s36, s36, {LCNT + oFREE}
    v_mov_b32 v12, s36
    s_lshl_b32 s36, s32, 2
    s_add_u32 s36, s36, {LCNT + oFULL}
    v_mov_b32 v13, s36
    """)
    dma(1)
    A(f"""
    s_lshl_b32 s66, s26, 4
    s_add_u32 s66, s66, s28
    s_lshl_b32 s66, s66, 7
    s_add_u32 s66, s66, {FLG}
    s_lshl_b32 s36, s32, 2
    s_add_u32 s36, s36, s66
    s_mov_b64 exec, 1
    buffer_store_dword v16, v16, s[16:19], s36 offen sc1
    s_mov_b64 exec, -1
    """)
    VQ.issue('pub')
    VQ.wait('st0')
    lstamp(A, 'lfirst')
    A("s_waitcnt lgkmcnt(0)\ns_barrier")
    if PUBST != 0: dma(2)
    VQ.wait('row')
    A("s_mov_b32 s36, 0x3f803f80")
    for q in range(8):
        A(f"v_dot2c_f32_bf16 v16, s36, v{RW+q}\nv_dot2c_f32_bf16 v17, v{RW+q}, v{RW+q}")
    for d in ("quad_perm:[1,0,3,2]", "quad_perm:[2,3,0,1]", "row_half_mirror", "row_mirror"):
        for x in (16, 17): A(f"v_add_f32_dpp v{x}, v{x}, v{x} {d} row_mask:0xf bank_mask:0xf")
    A(f"""
    v_mov_b32 v18, v16
    v_mov_b32 v19, v17
    v_permlane16_swap_b32 v18, v16
    v_permlane16_swap_b32 v19, v17
    v_add_f32 v16, v16, v18
    v_add_f32 v17, v17, v19
    v_mul_f32 v16, 0x3b000000, v16
    v_mul_f32 v17, 0x3b000000, v17
    v_fma_f32 v17, -v16, v16, v17
    v_max_f32 v17, 0, v17
    v_cvt_pk_bf16_f32 v16, v16, v17
    v_and_b32 v17, 0xffff0000, v16
    v_lshlrev_b32 v16, 16, v16
    v_add_f32 v17, 0x3727c5ac, v17
    v_cvt_pk_bf16_f32 v17, v17, v17
    v_and_b32 v17, 0xffff0000, v17
    v_sqrt_f32 v17, v17
    v_cvt_pk_bf16_f32 v17, v17, v17
    v_and_b32 v17, 0xffff0000, v17
    v_rcp_f32 v18, v17
    v_sub_f32 v16, 0, v16
    v_mov_b32 v17, v16
    v_mov_b32 v19, v18
    s_lshl_b32 s36, s67, 4
    s_add_u32 s36, s36, {ST16}
    v_lshlrev_b32 v22, 4, v23
    s_mov_b32 exec_lo, 1
    s_mov_b32 exec_hi, 1
    buffer_store_dwordx4 v[16:19], v22, s[16:19], s36 offen sc1
    s_mov_b64 exec, -1
    """)
    VQ.issue('pub')
    if PUBST == 0: dma(2)
    def pf(mult):
        A(f"""
        s_lshl_b32 s36, s2, 2
        s_add_u32 s36, s36, s32
        s_mul_i32 s42, s36, {512*mult}
        s_mul_i32 s43, s36, {1792*mult}
        v_lshlrev_b32 v20, 7, v0
        s_mov_b64 exec, {(1 << 4*mult) - 1}
        buffer_load_dword v151, v20, s[72:75], s42 offen
        s_mov_b64 exec, {(1 << 14*mult) - 1}
        buffer_load_dword v151, v20, s[76:79], s43 offen
        s_mov_b64 exec, -1
        """)
        VQ.issue('pf'); VQ.issue('pf')
    slot = {}
    nslot = [0]
    def unit(pos, direct, pace=0):
        t, wo, nat = p2_sb(pos, 's60')
        srd = 's[72:75]' if wo else 's[76:79]'
        offs = [0, 16, 4, 20] if nat else [0, 8, 16, 24]
        v = vBn if nat else vBp
        A(t + "\ns_lshl_b32 s60, s60, 15")
        if not direct: slot[pos] = STG + 16 * (nslot[0] % 9); nslot[0] += 1
        for o in range(4):
            so = 's60'
            if o: A(f"s_add_u32 s63, s60, {offs[o]*1024}"); so = 's63'
            if pace and len(VQ.q) >= pace:
                A(f"s_waitcnt vmcnt({pace-1})"); del VQ.q[:len(VQ.q) - (pace-1)]
            if direct: ld(f"s_add_u32 m0, s44, {(pos % 9)*BLK + 1024*o}", v, srd, so, f"u{pos}")
            else: A(f"buffer_load_dwordx4 {vr(slot[pos]+4*o,4)}, v{v}, {srd}, {so} offen"); VQ.issue(f"u{pos}")
    def wr(pos):
        VQ.wait(f"u{pos}")
        A(f"v_add_u32 v20, {(pos % 9)*BLK}, v9")
        for o in range(4):
            A(f"ds_write_b128 v20, {vr(slot[pos]+4*o,4)} offset:{1024*o}")
    def setfull(n):
        A(f"v_mov_b32 v22, {n}\nds_write_b32 v13, v22")
        if n == 5: lstamp(A, 'lf1')
        if n == 9: lstamp(A, 'lf9')
    def addw(off): A(f"v_mov_b32 v22, 1\ns_mov_b64 exec, 1\nds_add_u32 v21, v22 offset:{off}\ns_mov_b64 exec, -1")
    C = RW
    WS = STG + 64
    nsv = [0]
    def take(vp):
        A(f"v_cmp_eq_u32 vcc, 1, v{vp}\ns_nop 0\ns_or_b32 s98, s98, vcc_lo\nv_mov_b32 v14, s98\nds_write_b32 v13, v14 offset:{oSEEN-oFULL}")
    apn = [0]
    def apoll():
        apn[0] += 1; r = 2 + apn[0] % 2
        A(f"s_mov_b64 exec, s[46:47]\nbuffer_load_dword v{r}, v4, s[16:19], s41 offen sc1\ns_mov_b64 exec, -1"); VQ.issue(f"ap{apn[0]}")
        return r
    def service(rd, tgt, poll=True, allseen=False, full=None):
        nsv[0] += 1; lab = f"{P}_SV{nsv[0]}"
        test = (f"s_cmp_lg_u32 s98, s46" if allseen else f"{rd}\ns_cmp_lt_u32 s36, {tgt}")
        A(f"{test}\ns_cbranch_scc0 {lab}_OK\ns_mov_b32 s99, 0")
        if full is not None: A(f"s_waitcnt vmcnt(0)\nv_mov_b32 v22, {full}\nds_write_b32 v13, v22")
        A.label(lab)
        if poll:
            A(f"""
            s_cmp_eq_u32 s98, s46
            s_cbranch_scc1 {lab}_NP
            s_mov_b64 exec, s[46:47]
            buffer_load_dword v5, v4, s[16:19], s41 offen sc1
            s_mov_b64 exec, -1
            s_waitcnt vmcnt(0)
            """)
            take(5)
            A.label(f"{lab}_NP")
        A(f"s_sleep 1\ns_add_u32 s99, s99, 1\ns_cmp_ge_u32 s99, {SPIN}\ns_cbranch_scc1 {lab}_OK\n{test}\ns_cbranch_scc1 {lab}")
        A.label(f"{lab}_OK")
    def waitw(off, tgt, poll=False, full=None):
        service(f"ds_read_b32 v22, v21 offset:{off}\ns_waitcnt lgkmcnt(0)\nv_readfirstlane_b32 s36, v22", tgt, poll, full=full)
    def signal():
        A(f"""
        s_cmp_lg_u32 s32, 0
        s_cbranch_scc1 {P}_NOSIG
        s_and_b32 s36, s2, 15
        s_lshl_b32 s36, s36, 4
        v_mov_b32 v20, s36
        v_mov_b32 v22, 1
        s_mov_b64 exec, 1
        global_atomic_add v20, v22, s[70:71] sc1
        s_mov_b64 exec, -1
        """)
        A.label(f"{P}_NOSIG")
        VQ.issue('sig', sure=False)
    def cnt_issue():
        A(f"v_and_b32 v2, 0xf0, v{vL16}\nglobal_load_dword v3, v2, s[70:71] sc1"); VQ.issue('cnt')
    def gather_issue():
        A(f"""
        s_mul_i32 s36, s32, 36
        v_add_u32 v4, s36, v0
        v_lshlrev_b32 v5, 4, v4
        s_sub_u32 s41, s26, 1
        s_max_i32 s41, s41, 0
        s_sub_u32 s41, s41, s26
        s_lshl_b32 s41, s41, 11
        s_add_u32 s41, s41, {56*16}
        v_and_b32 v14, 0x70, v5
        v_and_b32 v15, 8, v4
        v_lshl_add_u32 v14, v15, 7, v14
        v_add_u32 v14, s41, v14
        v_cmp_gt_u32 vcc, 128, v4
        v_cndmask_b32 v14, v14, v5, vcc
        s_lshl_b32 s41, s26, 11
        s_add_u32 s41, s41, {ST16}
        v_add_u32 v14, s41, v14
        v_add_u32 v5, {LROW}, v5
        s_lshl_b32 s42, s28, 14
        s_lshl_b32 s36, s32, 8
        s_add_u32 s42, s42, s36
        s_add_u32 s42, s42, {CSP}
        v_lshrrev_b32 v23, 4, v0
        v_lshl_add_u32 v23, v23, 12, v2
        s_add_u32 s36, s36, {LCS}
        v_add_u32 v15, s36, v2
        """)
        VQ.wait('cnt')
        A(f"s_mov_b32 s61, 0\ns_branch {P}_CNT_T")
        A.label(f"{P}_CNT")
        A(f"""
        s_sleep 4
        global_load_dword v3, v2, s[70:71] sc1
        s_add_u32 s61, s61, 1
        s_cmp_ge_u32 s61, {SPIN}
        s_cbranch_scc1 {P}_CNTOK
        s_waitcnt vmcnt(0)
        """)
        A.label(f"{P}_CNT_T")
        A(f"v_cmp_gt_u32 vcc, 16, v3\ns_nop 1\ns_cbranch_vccnz {P}_CNT")
        A.label(f"{P}_CNTOK")
        lstamp(A, 'lcnt')
        A(f"s_mov_b32 exec_hi, 15\nbuffer_load_dwordx4 v[16:19], v14, s[16:19], 0 offen sc1\ns_mov_b32 exec_hi, -1"); VQ.issue('rs')
        for o in range(4):
            A(f"buffer_load_dwordx4 {vr(C+4*o,4)}, v23, s[16:19], s42 offen offset:{1024*o} sc1"); VQ.issue('cs')
    def gather_finish():
        VQ.wait('rs')
        A(f"s_mov_b32 exec_hi, 15\nds_write_b128 v5, v[16:19]")
        if qkv: A(f"v_lshlrev_b32 v4, 2, v4\nv_add_u32 v4, {LSM}, v4\nds_write_b32 v4, v16\nds_write_b32 v4, v18 offset:576")
        A("s_mov_b32 exec_hi, -1")
        VQ.wait('cs')
        for q in range(4):
            A(f"v_add_f32 v{C+q}, v{C+q}, v{C+4+q}\nv_add_f32 v{C+8+q}, v{C+8+q}, v{C+12+q}")
        for q in range(4): A(f"v_add_f32 v{C+q}, v{C+q}, v{C+8+q}")
        for sw in ("v_permlane32_swap_b32", "v_permlane16_swap_b32"):
            for q in range(4): A(f"v_mov_b32 v{C+4+q}, v{C+q}")
            for q in range(4): A(f"{sw} v{C+4+q}, v{C+q}")
            for q in range(4): A(f"v_add_f32 v{C+q}, v{C+q}, v{C+4+q}")
        A(f"ds_write_b128 v15, {vr(C,4)}")
        addw(8)
        lstamp(A, 'lstat')
    def poll_setup():
        p2_masks(A)
        A(f"""
        v_and_b32 v4, 15, v0
        v_lshlrev_b32 v4, 7, v4
        v_lshrrev_b32 v5, 4, v0
        v_lshl_add_u32 v4, v5, 2, v4
        s_mov_b32 s98, 0
        v_mov_b32 v2, 0
        v_mov_b32 v3, 0
        v_mov_b32 v5, 0
        """)
    NE = OPTV('nearlyq' if qkv else 'nearlyf', 0)
    early = set()
    TR = OPTV('trickq' if qkv else 'trickf', 0)
    GE = OPT('gearly')
    for st in range(6):
        VQ.wait({f"st{st+1}"} | ({'pub'} if st == PUBST else set()) | ({'st7'} if st == 5 else set()))
        A("s_barrier")
        if st == PUBST: signal()
        if st == 4 and GE: cnt_issue()
        if st + 3 <= 7: dma(st + 3)
        if st == OPTV('pfst', 1) and (qkv or OPT('pfboth')): pf(1 if OPT('pfboth') else 2)
        if st == 4:
            if GE: gather_issue()
            else: cnt_issue()
        if 5 - TR <= st <= 4:
            p = [8, 7, 6, 5][4 - st]; unit(p, p == 8); early.add(p)
    lstamp(A, 'lbar5')
    if not GE: gather_issue()
    unit(0, True); gather_finish(); poll_setup()
    for p in (1, 8, 5, 6, 7):
        if p not in early: unit(p, p in (1, 8))
    waitw(oR + 24, 8)
    for p in (2, 3, 4): unit(p, True)
    for p in range(9, 9 + NE): unit(p, False)
    VQ.wait({'u0', 'u1', 'u8', 'u2', 'u3', 'u4'})
    setfull(5)
    waitw(oR + 28, 8)
    for p in (5, 6, 7): wr(p)
    setfull(9)
    A("s_waitcnt lgkmcnt(0)")
    NWIN = OPTV('win', 0); PC = OPTV('pace', 3)
    if OPTV('wwait', 0): waitw(OPTV('wwait', 0) - 1, 4)
    for p in range(9 + NE, 9 + NE + NWIN):
        r = apoll()
        unit(p, False, PC)
        assert PC <= 4
        take(r)
    lstamp(A, 'lwin')
    pend = None; prev = None
    for pos in range(9, 18):
        service("ds_read_b64 v[16:17], v12\ns_waitcnt lgkmcnt(0)\nv_min_u32 v16, v16, v17\nv_readfirstlane_b32 s36, v16", pos - 8, full=(pend + 1 if pend is not None else None))
        if pos in slot:
            wr(pos)
            if pend is not None:
                VQ.wait(pendtag); pend = None
                if prev is not None: take(prev); prev = None
            setfull(pos + 1)
        else:
            cur = apoll() if not OPT('noap') else None
            unit(pos, True)
            if pend is not None:
                VQ.wait(pendtag); setfull(pend + 1)
                if prev is not None: take(prev)
            prev = cur; pend = pos; pendtag = {f"u{pos}"}
    if pend is not None: VQ.wait(pendtag); setfull(pend + 1)
    lstamp(A, 'lu17')
    service("", 0, allseen=True)
    A("s_waitcnt lgkmcnt(0)")
    if STAMP: stamp_out(A, 's32', STAMPS + 0x10000)
    A("s_endpgm")

def main():
    out = sys.argv[1]
    A = Asm()
    A.nopk = lambda ins: 'op_sel' in ins.mods
    A.raw(HEADER.rstrip())
    if STAMP: A.raw("; stamps: " + " ".join(SSET) + "\n; lstamps: " + " ".join(LSET))
    A.raw(f"; @launch grid=(256,1,1) block=(768,1,1) lds={LDS_TOTAL}")
    A.raw('.amdgcn_target "amdgcn-amd-amdhsa--gfx950"\n.text')
    prologue(A)
    phase2(A)
    emit_cold(A)
    A.raw(f""".section .rodata,"a"
.p2align 6
.amdhsa_kernel {NAME}_kernel
  .amdhsa_next_free_vgpr {NVGPR}
  .amdhsa_next_free_sgpr 100
  .amdhsa_accum_offset {NVGPR}
  .amdhsa_group_segment_fixed_size 0
  .amdhsa_kernarg_size 72
  .amdhsa_user_sgpr_count 2
  .amdhsa_user_sgpr_kernarg_segment_ptr 1
  .amdhsa_system_sgpr_workgroup_id_x 1
.end_amdhsa_kernel""")
    open(out, "w").write(A.text())
    print("nops inserted:", A.nops)
main()
```

```python
import sys
from asmlib import Asm

NAME = "parallel_sum__sliding_local_dilated__dense_activation_silu__prompt"
HEADER = open('cdna_kernels/' + NAME + '.s.ref').read().split('; Override')[0]
OPT = lambda n: ('--' + n) in sys.argv
def OPTV(n, d):
    for a in sys.argv:
        if a.startswith('--' + n + '='): return int(a.split('=')[1])
    return d
STAMP = OPT('stamp')

ST16 = 0xA00000
CSP = 0xA20000
FLG = 0xA80000
WS_USE = 0xB00000
STAMPS = 0x1000000
K = 1024
BLK = 16 * K
QSL = [42 * K, 84 * K, 0]
XB = [3, 4, 0, 1, 2, 3, 4, 5]
WR = 6
XSL = 144 * K
LSM = XSL
LROW = 156 * K; LCS = LROW + 2304
LCNT = 160 * K - 512
oFULL, oSEEN, oFREE, oR, oH, oWF, oLF = 16, 32, 48, 96, 128, 160, 192
assert LCS + 1024 <= LCNT
W2O = {2: 3*BLK, 3: 2*BLK, 4: 0, 5: BLK, 6: 3*BLK, 7: 2*BLK}
LDS_TOTAL = 163840
LOG2E = 0x3fb8aa3b
SPIN = 0x40000
NVGPR = 168
PUBST = OPTV('pubst', 0)
ORDER = OPTV('order', 2)

def vr(a, n): return f"v[{a}:{a+n-1}]" if n > 1 else f"v{a}"

class Q:
    def __init__(self, A, name, mx): self.A = A; self.q = []; self.name = name; self.mx = mx
    def issue(self, tag, sure=True):
        self.q.append((tag, sure))
        assert self.name != 'vmcnt' or len(self.q) <= 63, "vmcnt overflow"
    def wait_str(self, tags):
        tags = tags if isinstance(tags, (set, list, tuple)) else {tags}
        idx = -1
        for i, (t, s) in enumerate(self.q):
            if t in tags: idx = i
        if idx < 0: return None
        n = sum(1 for (t, s) in self.q[idx+1:] if s)
        self.q = self.q[idx+1:]
        return f"{self.name}({min(n, self.mx)})"
    def wait(self, tags):
        s = self.wait_str(tags)
        if s: self.A(f"s_waitcnt {s}")
    def drain(self): self.q = []

SETS = {'a': ['start', 'first', 'loop', 'epi', 'flag', 'poll0', 'p2loop', 'end'],
        'b': ['start', 'first', 'bar0', 'bar1', 'bar5', 'loop', 'stat', 'epi'],
        'c': ['start', 'first', 'bar0', 'bar1', 'bar2', 'bar3', 'bar4', 'bar5'],
        'd': ['start', 'flag', 'poll0', 'p1', 'p4', 'p8', 'p14', 'p2loop']}
SETS['h'] = ['start', 'bar4', 'hgo', 'h6', 'h7', 'loop', 'stat', 'epi']
SSET = SETS['h' if OPT('sh') else 'b' if OPT('sb') else 'c' if OPT('sc') else 'd' if OPT('sd') else 'a']
LSET = ['lstart', 'lfirst', 'lbar5', 'lstat', 'lf1', 'lf9', 'lwin', 'lu17'] if not OPT('sh') else ['lbar5', 'lcnt', 'lstat', 'lgo', 'g2', 'g3', 'g5', 'g7']
def _st(A, idx): A(f"{'s_memtime' if OPT('cyc') else 's_memrealtime'} s[{80+2*idx}:{81+2*idx}]\ns_waitcnt lgkmcnt(0)")
def stamp(A, name):
    if STAMP and name in SSET: _st(A, SSET.index(name))
def lstamp(A, name):
    if STAMP and name in LSET: _st(A, LSET.index(name))
def stamp_out(A, widx, base):
    A(f"s_lshl_b32 s36, s2, 8\ns_lshl_b32 s42, {widx}, 5\ns_add_u32 s36, s36, s42\ns_add_u32 s36, s36, {base}\nv_mov_b32 v6, 0")
    for i in range(8): A(f"v_mov_b32 v{24+i}, s{80+2*i}")
    A("buffer_store_dwordx4 v[24:27], v6, s[16:19], s36 offen\nbuffer_store_dwordx4 v[28:31], v6, s[16:19], s36 offen offset:16")

ONESK = 's40'
ATAB = [72, 73, 74, 75, 76, 77, 78, 79, 96, 97, 98, 99, 12, 13, 14, 15, 20, 21]
vL16, vS, vG = 1, 2, 3

def p2_sgprs(A):
    A(f"""
    s_lshl_b32 s48, s24, 2
    s_add_u32 s48, s48, s29
    s_mov_b32 s49, s27
    s_and_b32 s50, s29, {OPTV('mmask', 3)}
    s_lshl_b32 s50, s50, 1
    s_xor_b32 s50, s27, s50
    s_and_b32 s50, s50, {OPTV('omask', 7)}
    s_and_b32 s54, s50, 3
    s_and_b32 s55, s50, 1
    s_lshl_b32 s53, s32, 2
    s_mul_i32 s58, s32, 14
    """)
def p2_masks(A):
    A(f"""
    s_lshr_b32 s41, s48, 1
    s_lshl_b32 s41, s41, 11
    s_add_u32 s41, s41, {FLG}
    s_and_b32 s43, s48, 1
    s_lshl_b32 s36, s32, 1
    s_lshl_b32 s43, s43, 4
    s_add_u32 s43, s43, s36
    s_lshl_b32 s42, 3, s43
    s_lshr_b32 s43, s50, 2
    s_add_u32 s43, s43, s36
    s_add_u32 s43, s43, 8
    s_xor_b32 s62, s43, 1
    s_lshl_b32 s43, 1, s43
    s_lshl_b32 s62, 1, s62
    s_add_u32 s36, s36, 24
    s_lshl_b32 s56, 3, s36
    s_or_b32 s46, s42, s43
    s_or_b32 s46, s46, s62
    s_or_b32 s46, s46, s56
    s_mov_b32 s47, 0
    """)
def p2_sb(pos, dst, extra=0):
    if ORDER == 1 and pos >= 8: pos = pos + 6 if pos < 12 else pos - 4
    if ORDER == 2: pos = pos + 14 if pos < 4 else pos - 4
    if pos < 8:
        t = f"s_xor_b32 {dst}, s50, {pos}\ns_and_b32 s36, {dst}, 4\ns_add_u32 {dst}, {dst}, s36\ns_add_u32 {dst}, {dst}, s58"
        if extra: t += f"\ns_add_u32 {dst}, {dst}, {extra}"
        return (t, False, False)
    if pos < 12:
        t = f"s_xor_b32 {dst}, s54, {pos-8}\ns_and_b32 s36, {dst}, 2\ns_mul_i32 s36, s36, 3\ns_add_u32 {dst}, {dst}, s36\ns_add_u32 {dst}, {dst}, s58\ns_add_u32 {dst}, {dst}, {4+extra}"
        return (t, False, False)
    if pos < 14:
        return (f"s_xor_b32 {dst}, s55, {pos-12}\ns_add_u32 {dst}, {dst}, s58\ns_add_u32 {dst}, {dst}, {6+extra}", False, True)
    return (f"s_xor_b32 {dst}, s54, {pos-14}\ns_add_u32 {dst}, {dst}, s53", True, True)

COLD = []
def cold(lab, text): COLD.append((lab, text))
def emit_cold(A):
    for lab, text in COLD:
        A.label(lab); A.reset_hist()
        for ln in text.strip().split('\n'):
            ln = ln.strip()
            if ln.endswith(':'): A.label(ln[:-1])
            elif ln: A(ln)
def chk(A, LQ, lab, tag, va, vt, off, test):
    LQ.wait(tag)
    A(f"v_readfirstlane_b32 s36, v{vt}\n{test}\ns_cbranch_scc1 {lab}")
    A.label(f"{lab}_OK")
    cold(lab, f"""
    s_mov_b32 s60, 0
    {lab}_L:
    s_sleep 1
    ds_read_b32 v{vt}, v{va} offset:{off}
    s_add_u32 s60, s60, 1
    s_cmp_ge_u32 s60, {SPIN*4}
    s_cbranch_scc1 {lab}_OK
    s_waitcnt lgkmcnt(0)
    v_readfirstlane_b32 s36, v{vt}
    {test}
    s_cbranch_scc1 {lab}_L
    s_branch {lab}_OK
    """)

def prologue(A):
    A.raw(f".globl {NAME}_kernel\n.p2align 8\n.type {NAME}_kernel,@function\n{NAME}_kernel:")
    A(f"""
    s_cmp_ge_u32 s2, 256
    s_cbranch_scc1 L_END
    s_load_dwordx4 s[4:7], s[0:1], 0
    s_load_dwordx4 s[20:23], s[0:1], 32
    s_load_dwordx2 s[16:17], s[0:1], 64
    s_load_dwordx2 s[64:65], s[0:1], 16
    s_load_dwordx4 s[68:71], s[0:1], 48
    v_lshrrev_b32 v4, 6, v0
    v_and_b32 v0, 63, v0
    v_readfirstlane_b32 s3, v4
    s_and_b32 s24, s2, 7
    s_lshr_b32 s25, s2, 3
    """)
    if OPT('local'):
        A("""
        s_and_b32 s27, s25, 7
        s_lshr_b32 s29, s25, 3
        s_lshl_b32 s26, s24, 1
        s_lshr_b32 s36, s25, 4
        s_add_u32 s26, s26, s36
        s_and_b32 s28, s25, 15
        """)
    else:
        A("""
    s_and_b32 s36, s24, 1
    s_lshl_b32 s26, s36, 3
    s_and_b32 s27, s25, 7
    s_add_u32 s26, s26, s27
    s_lshr_b32 s37, s24, 1
    s_lshr_b32 s29, s25, 3
    s_lshl_b32 s28, s37, 1
    s_and_b32 s38, s29, 1
    s_add_u32 s28, s28, s38
    s_and_b32 s39, s29, 2
    s_lshl_b32 s39, s39, 2
    s_add_u32 s28, s28, s39
        """)
    A(f"""
    s_lshl_b32 s34, s26, 7
    s_and_b32 s32, s3, 3
    s_mov_b32 s10, 0x200000
    s_mov_b32 s11, 0x20000
    s_mov_b32 s18, {0x2000000 if STAMP else WS_USE}
    s_mov_b32 s19, 0x20000
    v_lshlrev_b32 v{vL16}, 4, v0
    s_cmp_lt_u32 s3, 8
    s_cbranch_scc1 L_COMPUTE
    """)
    loader(A)
    A.label("L_COMPUTE"); A.reset_hist()
    A(f"""
    s_lshr_b32 s31, s3, 2
    s_and_b32 s35, s3, 1
    s_mov_b32 s40, 0x3f803f80
    v_and_b32 v{vS}, 15, v0
    v_lshrrev_b32 v{vG}, 4, v0
    v_bfe_u32 v47, v0, 2, 2
    v_and_b32 v48, 3, v0
    v_lshrrev_b32 v44, 1, v{vS}
    v_xor_b32 v44, v{vG}, v44
    v_lshlrev_b32 v44, 4, v44
    v_lshl_or_b32 v44, v{vS}, 7, v44
    v_lshrrev_b32 v45, 1, v47
    v_and_b32 v49, 1, v{vG}
    v_lshl_or_b32 v45, v49, 1, v45
    v_lshlrev_b32 v46, 7, v47
    v_lshl_add_u32 v46, v48, 3, v46
    s_lshl_b32 s66, s26, 4
    s_add_u32 s66, s66, s28
    s_lshl_b32 s66, s66, 7
    s_add_u32 s66, s66, {FLG}
    """)
    p2_sgprs(A)
    A("s_waitcnt lgkmcnt(0)\ns_mov_b32 s8, s4\ns_mov_b32 s9, s5")
    stamp(A, 'start')
    for pos in range(18):
        t, wo, nat = p2_sb(pos, f"s{ATAB[pos]}", 16)
        A(t + f"\ns_lshl_b32 s{ATAB[pos]}, s{ATAB[pos]}, 10")
    A("s_cmp_ge_u32 s28, 8\ns_cbranch_scc1 L_FFN")
    path(A, 'qkv')
    A.label("L_FFN"); A.reset_hist()
    A(f"""
    s_sub_u32 s37, s28, 8
    s_and_b32 s39, s37, 1
    s_cmp_ge_u32 s3, 4
    s_cbranch_scc1 L_FFN3
    """)
    path(A, 'ffn4')
    A.label("L_FFN3"); A.reset_hist()
    path(A, 'ffn3')

def path(A, kind):
    P = kind.upper()
    qkv = kind == 'qkv'
    nA = 5 if qkv else 4
    nB = 4 if kind == 'ffn4' else 3
    LQ = Q(A, 'lgkmcnt', 15)
    CSr = 12
    ON = 24 if qkv else 28
    F = [40, 72]
    ACC = 104
    vC, vT = 36, 37
    if qkv:
        aA = [[4, 5], [32, 33]]; aH = [[6, 7], [9, 11]]; aB = [[8], [39]]
    else:
        aA = [[4, 5], [32, 33]]; aB = [[6, 7, 8, 9], [10, 11, 34, 35]] if kind == 'ffn4' else [[6, 7, 8], [34, 35]]
    def fA(s, i): return F[s] + 4 * i
    def fB(s, j): return F[s] + 4 * (nA + j)
    hs = 's31' if qkv else 's35'
    A(f"""
    s_lshl_b32 s36, {hs}, 13
    v_add_u32 v{aA[0][0]}, s36, v44
    v_xor_b32 v{aA[0][1]}, 64, v{aA[0][0]}
    v_add_u32 v{aA[1][0]}, 0x10000, v{aA[0][0]}
    v_add_u32 v{aA[1][1]}, 0x10000, v{aA[0][1]}
    """)
    if qkv:
        A(f"""
        v_and_b32 v36, 7, v{vS}
        v_lshrrev_b32 v37, 1, v36
        v_xor_b32 v37, v{vG}, v37
        v_lshlrev_b32 v37, 4, v37
        v_lshl_or_b32 v37, v36, 7, v37
        s_mul_i32 s36, s31, {1024+64}
        s_add_u32 s36, s36, 16384
        v_xor_b32 v{aH[0][0]}, s36, v37
        v_xor_b32 v{aH[0][1]}, 64, v{aH[0][0]}
        v_mul_u32_u24 v37, 3072, v{vG}
        v_add_u32 v46, v46, v37
        v_xor_b32 v36, s32, v45
        v_lshl_add_u32 v{aB[0][0]}, v36, 5, v46
        s_lshl_b32 s67, s32, 6
        """)
        cbo = [0, 256, 512]
    elif kind == 'ffn4':
        A(f"s_lshr_b32 s36, s3, 1\ns_lshl_b32 s67, s36, 8\ns_lshl_b32 s36, s36, 10\nv_mul_u32_u24 v37, 3072, v{vG}\nv_add3_u32 v46, v46, v37, s36")
        for c in range(4):
            A(f"v_xor_b32 v36, {c}, v45\nv_lshl_add_u32 v{aB[0][c]}, v36, 5, v46\nv_add_u32 v{aB[1][c]}, 0x10000, v{aB[0][c]}")
        cbo = [0, 64, 128, 192]
    else:
        A(f"s_and_b32 s63, s3, 2\ns_lshr_b32 s36, s63, 1\ns_lshl_b32 s67, s63, 6\nv_mul_u32_u24 v37, 3072, v{vG}\nv_add_u32 v46, v46, v37")
        for c in range(2):
            A(f"v_xor_b32 v36, s63, v45\nv_xor_b32 v36, {c}, v36\nv_lshl_add_u32 v{aB[0][c]}, v36, 5, v46\nv_add_u32 v{aB[1][c]}, 0x10000, v{aB[0][c]}")
        A(f"""
        v_lshlrev_b32 v36, 9, v{vG}
        v_lshl_add_u32 v36, v47, 6, v36
        v_lshl_add_u32 v36, v48, 3, v36
        v_xor_b32 v37, s36, v49
        v_lshl_add_u32 v36, v37, 5, v36
        v_add_u32 v{aB[0][2]}, {XSL}, v36
        s_lshl_b32 s62, s63, 5
        s_sub_u32 s62, 768, s62
        """)
        cbo = [512, 576, None]
    A(f"v_lshlrev_b32 v38, 4, v{vG}")
    if kind == 'ffn3':
        A(f"""
        v_lshl_add_u32 v39, v{vS}, 6, v38
        v_add_u32 v39, 512, v39
        v_add_u32 v38, s62, v38
        v_cmp_eq_u32 vcc, 2, v{vS}
        v_cndmask_b32 v38, v39, v38, vcc
        """)
    else:
        A(f"v_lshl_add_u32 v38, v{vS}, {8 if qkv else 6}, v38")
    m = (1 << nB) - 1
    A(f"""
    s_lshl_b32 s36, s28, 4
    s_add_u32 s36, s36, s26
    s_lshl_b32 s36, s36, 10
    s_add_u32 s41, s36, s67
    s_add_u32 s41, s41, {CSP}
    s_mov_b32 s44, {m | (m << 16)}
    s_mov_b32 s45, {m | (m << 16)}
    """)
    for r in range(4): A(f"v_mov_b32 v{ON+r}, {ONESK}")
    epi_setup(A, kind, hs)
    if qkv:
        A(f"v_add_u32 v{aH[1][0]}, 0x10000, v{aH[0][0]}\nv_add_u32 v{aH[1][1]}, 0x10000, v{aH[0][1]}\nv_add_u32 v{aB[1][0]}, 0x10000, v{aB[0][0]}")
    A(f"v_mov_b32 v{vC}, {LCNT}")

    def emit(item):
        if isinstance(item, tuple):
            k, text, tag = item
            A(text); LQ.issue(tag)
        elif callable(item): item()
        else: A(item)
    def rd(op, dst, regs, off, tag):
        return ('L', f"{op} {dst}, v{regs[off >> 16]} offset:{off & 0xffff}", tag)
    def reads(s, st, hf):
        RB = []
        for j in range(nB):
            if qkv: regs = [aB[0][0], aB[1][0]]; o = QSL[st % 3] + 18*K + 1024*j + hf*12288; ts = 512
            elif kind == 'ffn4': regs = [aB[0][j], aB[1][j]]; o = QSL[st % 3] + 18*K + hf*12288; ts = 512
            elif j < 2: regs = [aB[0][j], aB[1][j]]; o = QSL[st % 3] + 18*K + 2048 + hf*12288; ts = 512
            else: regs = [aB[0][2]]; o = (st % 3) * 4096 + hf*2048; ts = 256
            RB.append([rd("ds_read_b64_tr_b16", vr(fB(s,j),2), regs, o, f"B{s}{j}"), rd("ds_read_b64_tr_b16", vr(fB(s,j)+2,2), regs, o + ts, f"B{s}{j}")])
        ab = QSL[st % 3]
        RA = [rd("ds_read_b128", vr(fA(s,i),4), [aA[0][hf], aA[1][hf]], ab + 2048*i, f"A{s}{i}") for i in range(4)]
        if qkv: RA.append(rd("ds_read_b128", vr(fA(s,4),4), [aH[0][hf], aH[1][hf]], ab, f"A{s}4"))
        out = RB[0] + RA[:4] + RB[1] + RA[4:]
        for j in range(2, nB): out += RB[j]
        return out
    def mfmas(s):
        M = []
        if qkv:
            for i in range(4): M.append((ACC+4*i, fB(s,0), fA(s,i), {f"B{s}0", f"A{s}{i}"}))
            for i in (1, 2, 3, 4, 0):
                a = 4 if i == 0 else i - 1
                M.append((ACC+4*(4+i), fB(s,1), fA(s,a), {f"B{s}1", f"A{s}{a}"}))
            for i in range(5):
                a = 4 if i == 0 else i - 1
                M.append((ACC+4*(9+i), fA(s,a), fB(s,2), {f"B{s}2", f"A{s}{a}"}))
        else:
            for j in range(nB):
                for i in range(4):
                    M.append((ACC+4*(i*nB+j), fB(s,j), fA(s,i), {f"B{s}{j}", f"A{s}{i}"}))
        return M
    def run(M, slots, first=False):
        for mi, (m, its) in enumerate(zip(M, slots)):
            d, a, b, deps = m
            G = OPTV('wgran', 1)
            if mi % G == 0:
                LQ.wait(set().union(*[mm[3] for mm in M[mi:mi+G]]))
            A(f"v_mfma_f32_16x16x32_bf16 {vr(d,4)}, {vr(a,4)}, {vr(b,4)}, {'0' if first else vr(d,4)}")
            for it in its: emit(it)
    def spread(n, items, start=0, end=None):
        end = n if end is None else end
        S = [[] for _ in range(n)]
        k = len(items); span = end - start
        for x, it in enumerate(items):
            S[start + (x * span) // max(k, 1)].append(it)
        return S
    def merge(*Ss): return [sum(parts, []) for parts in zip(*Ss)]
    def cs_mfma():
        A(f"s_cmp_lg_u32 {hs}, 0\ns_cbranch_scc1 {P}_NOCS1")
        for j in range(nB):
            A(f"v_mfma_f32_16x16x32_bf16 {vr(CSr+4*j,4)}, {vr(fB(0,j),4)}, {vr(ON,4)}, 0")
        A.label(f"{P}_NOCS1")
    def cs_store():
        A(f"s_cmp_lg_u32 {hs}, 0\ns_cbranch_scc1 {P}_NOCS2")
        for j in range(1, nB):
            A(f"v_cmp_eq_u32 vcc, {j}, v{vS}")
            for q in range(4): A(f"v_cndmask_b32 v{CSr+q}, v{CSr+q}, v{CSr+4*j+q}, vcc")
        A(f"s_mov_b64 exec, s[44:45]\nbuffer_store_dwordx4 {vr(CSr,4)}, v38, s[16:19], s41 offen sc1\ns_mov_b64 exec, -1")
        A.label(f"{P}_NOCS2")
    def sig(off): return ('L', f"v_mov_b32 v38, 1\ns_mov_b64 exec, 1\nds_add_u32 v{vC}, v38 offset:{off}\ns_mov_b64 exec, -1", 'sg')
    def pre(off, tag): return ('L', f"ds_read_b32 v{vT}, v{vC} offset:{off}", tag)
    pubst = PUBST
    def bar(st):
        A("s_waitcnt " + ("vmcnt(0) " if st == pubst else "") + "lgkmcnt(0)"); LQ.drain()
        A("s_barrier")
        stamp(A, f"bar{st}")

    A("s_barrier")
    stamp(A, 'first')
    for r in reads(0, 0, 0): emit(r)
    if PUBST == 0:
        A("s_waitcnt lgkmcnt(0)"); LQ.drain()
        cs_mfma()
    n = len(mfmas(0))
    for st in range(8):
        cnt = st > 5
        X = reads(1, st, 1)
        if cnt: X = X + [sig(oR + 4*st)]
        SX = spread(n, X, 0, n - 1 if cnt else n - 2)
        if st == 0 and PUBST == 0: SX[2] = SX[2] + [cs_store]
        run(mfmas(0), SX, first=(st == 0))
        if st == 0 and PUBST != 0: cs_mfma()
        MY = mfmas(1)
        bs = OPTV('bshift', 3) if not cnt else 0
        if bs: run(MY[:bs], [[] for _ in range(bs)])
        MY = MY[bs:]; ny = len(MY)
        if not cnt:
            bar(st)
            if st == 5 and kind == 'ffn4': A(f"s_setprio {OPTV('cprio', 1)}")
        ex = [cs_store] if (st == 0 and PUBST != 0) else []
        Y = reads(0, st + 1, 0) if st < 7 else []
        if st == 7:
            S = [[] for _ in range(ny)]; S[ny-3] = [pre(8, 'sp')]
            run(MY, S)
        else:
            if bs and Y:
                for it in Y[:2]: emit(it)
                Y = Y[2:]
            run(MY, merge(spread(ny, Y, 0, ny - 1), spread(ny, ex, 2, ny)))
    if kind == 'ffn4': A(f"s_setprio {OPTV('eprio', 0)}")
    if kind == 'ffn3': A(f"s_setprio {OPTV('hprio', 0)}")
    stamp(A, 'loop')
    chk(A, LQ, f"{P}_SSP", 'sp', vC, vT, 8, "s_cmp_lt_u32 s36, 4")
    stamp(A, 'stat')
    A(f"s_mov_b32 s60, {LOG2E | 0x80000000}\ns_mov_b32 s61, {LOG2E | 0x80000000}")
    SR4 = 72
    A(f"""
    s_lshl_b32 s36, {hs}, 10
    s_add_u32 s36, s36, {LROW}
    v_lshl_add_u32 v36, v{vS}, 4, s36
    s_add_u32 s42, s67, {LCS}
    v_lshl_add_u32 v37, v{vG}, 4, s42
    """)
    A(f"ds_read_b128 {vr(SR4,4)}, v36")
    for j in range(2 if qkv else nB):
        if cbo[j] is not None: A(f"ds_read_b128 {vr(CSr+4*j,4)}, v37 offset:{cbo[j]}")
        else: A(f"v_add_u32 v38, s62, v37\nds_read_b128 {vr(CSr+4*j,4)}, v38")
    for i in range(1, 4): A(f"ds_read_b128 {vr(SR4+4*i,4)}, v36 offset:{256*i}")
    if qkv:
        qkv_epilogue(A, ACC, SR4, CSr)
        A("s_branch L_P2")
        return
    if kind == 'ffn4' and OPT('lonopk'): A.nopk = lambda ins: True
    A("s_waitcnt lgkmcnt(0)")
    for i in range(4): A(f"v_pk_mul_f32 {vr(SR4+4*i+2,2)}, s[60:61], {vr(SR4+4*i+2,2)}")
    TM = 40; SP = 56
    deferred = []
    for i in range(4):
        st = SR4 + 4*i
        for j in range(nB):
            a = ACC + 4*(i*nB+j); t = TM + 4*j
            for q in (0, 2): A(f"v_pk_fma_f32 {vr(a+q,2)}, {vr(CSr+4*j+q,2)}, {vr(st,2)}, {vr(a+q,2)}")
            for q in (0, 2): A(f"v_pk_mul_f32 {vr(a+q,2)}, {vr(a+q,2)}, {vr(st+2,2)}")
            for q in range(4): A(f"v_exp_f32 v{t+q}, v{a+q}")
        for j in range(nB):
            t = TM + 4*j
            for q in (0, 2): A(f"v_pk_fma_f32 {vr(t+q,2)}, {vr(t+q,2)}, s[60:61], s[60:61]")
            for q in range(4): A(f"v_rcp_f32 v{t+q}, v{t+q}")
        for j in range(nB):
            a = ACC + 4*(i*nB+j); t = TM + 4*j
            for q in (0, 2): A(f"v_pk_mul_f32 {vr(t+q,2)}, {vr(a+q,2)}, {vr(t+q,2)}")
        base = ACC + 4*(i*nB)
        for j in range(nB):
            t = TM + 4*j
            d = base + 2*j if not (kind == 'ffn3' and j == 2) else SP + 4*(i//2) + 2*(i%2)
            A(f"v_cvt_pk_bf16_f32 v{d}, v{t}, v{t+1}\nv_cvt_pk_bf16_f32 v{d+1}, v{t+2}, v{t+3}")
        def st_i(i=i, base=base):
            A(f"buffer_store_dwordx4 {vr(base,4)}, v{vL16}, s[16:19], s51 offen sc1")
            if kind == 'ffn4':
                A(f"buffer_store_dwordx4 {vr(base+4,4)}, v{vL16}, s[16:19], s51 offen offset:1024 sc1")
            elif i % 2 == 1:
                d = SP + 4*(i//2)
                A(f"v_permlane16_swap_b32 v{d}, v{d+2}\nv_permlane16_swap_b32 v{d+1}, v{d+3}")
                A(f"buffer_store_dwordx4 {vr(d,4)}, v10, s[16:19], s52 offen sc1\ns_add_u32 s52, s52, {2*72*1024}")
            A(f"s_add_u32 s51, s51, {72*1024}")
        if OPTV('defer', 0) & (1 if kind == 'ffn4' else 2): deferred.append(st_i)
        else: st_i()
    for f in deferred: f()
    A.nopk = lambda ins: 'op_sel' in ins.mods
    if kind == 'ffn4': A("s_branch L_P2")

def epi_setup(A, kind, hs):
    qkv = kind == 'qkv'
    A(f"""
    s_lshl_b32 s43, s26, 1
    s_add_u32 s43, s43, {hs}
    s_mul_i32 s43, s43, {4*72*1024}
    """)
    if kind != 'ffn4':
        A(f"""
        v_and_b32 v10, 1, v{vG}
        v_lshrrev_b32 v11, 1, v{vG}
        v_lshlrev_b32 v39, 4, v{vS}
        v_lshl_add_u32 v39, v11, 8, v39
        v_mul_u32_u24 v10, {72*1024}, v10
        v_add_u32 v10, v10, v39
        """)
    if qkv:
        A(f"""
        s_lshl_b32 s51, s28, 1
        s_lshr_b32 s52, s32, 1
        s_add_u32 s51, s51, s52
        s_lshl_b32 s51, s51, 10
        s_add_u32 s51, s51, s43
        s_lshl_b32 s52, s35, 9
        s_add_u32 s51, s51, s52
        v_lshlrev_b32 v36, 2, v{vG}
        v_sub_u32 v36, v{vS}, v36
        s_mov_b32 s52, 0xf149f2ca
        v_mov_b32 v37, s52
        """)
        BC = 160; BP = 164; MC = 34; TMP = 50
        for r in range(4):
            A(f"""
            v_subrev_u32 v39, {r}, v36
            v_cmp_gt_u32 vcc, 8, v39
            v_cndmask_b32_e64 v{BC+r}, v37, 0, vcc
            v_cmp_gt_i32 vcc, -8, v39
            v_cndmask_b32_e64 v{BP+r}, v37, 0, vcc
            v_cmp_le_i32 vcc, 0, v39
            v_cndmask_b32_e64 v{TMP+r}, 0, -1, vcc
            """)
        A(f"""
        s_mov_b32 s36, 0xffff
        v_bfi_b32 v{MC}, s36, v{TMP}, v{TMP+1}
        v_bfi_b32 v{MC+1}, s36, v{TMP+2}, v{TMP+3}
        s_cmp_eq_u32 s26, 0
        s_cselect_b32 s52, s52, 0
        """)
        for r in range(4): A(f"v_min_f32 v{28+r}, s52, v{BP+r}")
    else:
        A(f"""
        s_mul_i32 s51, s37, 7
        s_add_u32 s51, s51, 16
        s_cmp_eq_u32 s39, 0
        s_cselect_b32 s52, 6, 0
        s_add_u32 s52, s52, s51
        s_add_u32 s51, s51, s39
        """)
        if kind == 'ffn4':
            A("s_and_b32 s36, s3, 2\ns_add_u32 s51, s51, s36")
        else:
            A("s_lshr_b32 s36, s63, 1\ns_add_u32 s51, s51, s36\ns_add_u32 s51, s51, 4")
            A("s_lshl_b32 s52, s52, 10\ns_add_u32 s52, s52, s43\ns_lshl_b32 s36, s36, 9\ns_add_u32 s52, s52, s36")
        A(f"s_lshl_b32 s51, s51, 10\ns_add_u32 s51, s51, s43")

def qkv_epilogue(A, ACC, SR, CR):
    BC = 160; BP = 164; BP0 = 28; MC = 34; ONES = 24
    QP = 92; KPr = [4, 6, 8, 100, 102]
    VS = [(36, 20), (40, 44), (48, 52), (56, 60), (64, 68)]
    CV = 32
    A(f"""
    v_and_b32 v4, 7, v{vS}
    s_lshl_b32 s36, s31, 7
    s_add_u32 s36, s36, {LROW + 2048}
    v_lshl_add_u32 v4, v4, 4, s36
    ds_read_b128 {vr(SR+16,4)}, v4
    v_lshl_add_u32 v5, v{vS}, 2, s42
    ds_read_b32 v{CV}, v5 offset:512
    ds_read_b32 v{CV+1}, v5 offset:512
    s_lshl_b32 s36, s31, 8
    s_add_u32 s36, s36, {LSM}
    v_lshl_add_u32 v6, v{vG}, 4, s36
    s_lshl_b32 s36, s31, 5
    s_add_u32 s36, s36, {LSM + 512}
    v_and_b32 v7, 16, v0
    v_add_u32 v7, s36, v7
    s_waitcnt lgkmcnt(3)
    """)
    def corr_sw(a, st, cs, dst):
        for q in (0, 2): A(f"v_pk_fma_f32 {vr(a+q,2)}, {vr(cs+q,2)}, {vr(st,2)}, {vr(a+q,2)}")
        for q in (0, 2): A(f"v_pk_mul_f32 {vr(a+q,2)}, {vr(a+q,2)}, {vr(st+2,2)}")
        A(f"v_cvt_pk_bf16_f32 v{dst}, v{a}, v{a+1}\nv_cvt_pk_bf16_f32 v{dst+1}, v{a+2}, v{a+3}")
    for i in range(4):
        A(f"ds_read_b128 {vr(VS[i+1][0],4)}, v6 offset:{64*i}\nds_read_b128 {vr(VS[i+1][1],4)}, v6 offset:{64*i+576}")
    A(f"ds_read_b128 {vr(VS[0][0],4)}, v7\nds_read_b128 {vr(VS[0][1],4)}, v7 offset:576")
    for i in range(4): corr_sw(ACC + 4*i, SR + 4*i, CR, QP + 2*i)
    A("s_waitcnt lgkmcnt(10)")
    for i in range(5): corr_sw(ACC + 4*(4+i), SR + (16 if i == 0 else 4*(i-1)), CR + 4, KPr[i])
    for b in range(4):
        A(f"v_mfma_f32_16x16x16_bf16 {vr(ACC+8*b,4)}, {vr(KPr[b+1],2)}, {vr(QP+2*b,2)}, {vr(BC,4)}")
        A(f"v_mfma_f32_16x16x16_bf16 {vr(ACC+8*b+4,4)}, {vr(KPr[b],2)}, {vr(QP+2*b,2)}, {vr(BP0 if b == 0 else BP,4)}")
    VP = SR
    A("s_waitcnt lgkmcnt(0)")
    for i in range(5):
        a = ACC + 4*(9+i); vm, vs = VS[i]
        for q in (0, 2): A(f"v_pk_fma_f32 {vr(a+q,2)}, {vr(vm+q,2)}, {vr(CV,2)}, {vr(a+q,2)}")
        for q in (0, 2): A(f"v_pk_mul_f32 {vr(a+q,2)}, {vr(a+q,2)}, {vr(vs+q,2)}")
        A(f"v_cvt_pk_bf16_f32 v{VP+2*i}, v{a}, v{a+1}\nv_cvt_pk_bf16_f32 v{VP+2*i+1}, v{a+2}, v{a+3}")
    MX = 12
    A(f"s_mov_b32 s60, 0x3eb8aa3b")
    for b in range(4):
        c = ACC + 8*b
        for r in range(4): A(f"v_max_f32 v{c+r}, v{c+r}, v{c+4+r}")
    for b in range(4): A(f"v_max3_f32 v{MX+b}, v{ACC+8*b}, v{ACC+8*b+1}, v{ACC+8*b+2}")
    for b in range(4): A(f"v_max_f32 v{MX+b}, v{MX+b}, v{ACC+8*b+3}")
    A(f"""
    v_permlane32_swap_b32 v{MX}, v{MX+1}
    v_permlane32_swap_b32 v{MX+2}, v{MX+3}
    v_max_f32 v{MX}, v{MX}, v{MX+1}
    v_max_f32 v{MX+2}, v{MX+2}, v{MX+3}
    v_permlane16_swap_b32 v{MX}, v{MX+2}
    v_max_f32 v{MX}, v{MX}, v{MX+2}
    v_mul_f32 v{MX}, s60, v{MX}
    v_mov_b32 v{MX+2}, v{MX}
    v_permlane16_swap_b32 v{MX}, v{MX+2}
    v_mov_b32 v{MX+1}, v{MX}
    v_mov_b32 v{MX+3}, v{MX+2}
    v_permlane32_swap_b32 v{MX}, v{MX+1}
    v_permlane32_swap_b32 v{MX+2}, v{MX+3}
    """)
    for b in range(4):
        c = ACC + 8*b
        for r in range(4): A(f"v_fma_f32 v{c+r}, v{c+r}, s60, -v{MX+b}")
        for r in range(4): A(f"v_exp_f32 v{c+r}, v{c+r}")
    for b in range(4):
        c = ACC + 8*b
        A(f"""
        v_cvt_pk_bf16_f32 v{c}, v{c}, v{c+1}
        v_cvt_pk_bf16_f32 v{c+1}, v{c+2}, v{c+3}
        v_bfi_b32 v{c+4}, v{MC}, 0, v{c}
        v_bfi_b32 v{c+5}, v{MC+1}, 0, v{c+1}
        v_and_b32 v{c+6}, v{MC}, v{c}
        v_and_b32 v{c+7}, v{MC+1}, v{c+1}
        """)
    OD = 136
    for b in range(4):
        c = ACC + 8*b
        A(f"v_mfma_f32_16x16x32_bf16 {vr(OD+8*b+4,4)}, {vr(ONES,4)}, {vr(c+4,4)}, 0")
        A(f"v_mfma_f32_16x16x32_bf16 {vr(OD+8*b,4)}, {vr(VP+2*b,4)}, {vr(c+4,4)}, 0")
    for b in range(4): A(f"v_rcp_f32 v{OD+8*b+4}, v{OD+8*b+4}")
    PK = ACC
    for b in range(4):
        o = OD + 8*b
        for q in range(4): A(f"v_mul_f32 v{o+q}, v{o+q}, v{o+4}")
        A(f"v_cvt_pk_bf16_f32 v{PK+2*b}, v{o}, v{o+1}\nv_cvt_pk_bf16_f32 v{PK+2*b+1}, v{o+2}, v{o+3}")
        if b % 2 == 1:
            d = PK + 2*(b-1)
            A(f"v_permlane16_swap_b32 v{d}, v{d+2}\nv_permlane16_swap_b32 v{d+1}, v{d+3}")
            A(f"buffer_store_dwordx4 {vr(d,4)}, v10, s[16:19], s51 offen sc1\ns_add_u32 s51, s51, {2*72*1024}")

NRING = OPTV('nring', 4); NBF = OPTV('nbf', 3)
def phase2(A):
    A.label("L_P2"); A.reset_hist()
    A("s_nop 1")
    stamp(A, 'epi')
    VQ = Q(A, 'vmcnt', 63); LQ = Q(A, 'lgkmcnt', 15)
    RA = 4; vAo = [16, 17]; vOut = 18; XR = 160; ACC = 24; BF = [56 + 16*i for i in range(NBF)]; AF = 56 + 16*NBF
    assert AF + 8*NRING <= XR
    vFr, vFv, vSy, vSv = 20, 21, 22, 23
    A(f"""
    v_bfe_u32 v24, v0, 2, 3
    v_lshrrev_b32 v25, 1, v24
    v_lshrrev_b32 v26, 5, v0
    v_lshlrev_b32 v26, 10, v26
    v_lshl_add_u32 v26, v24, 7, v26
    v_and_b32 v27, 3, v0
    v_lshl_add_u32 v26, v27, 3, v26
    s_lshl_b32 s36, s32, 12
    v_add_u32 v26, s36, v26
    """)
    for c in range(4):
        A(f"""
        s_add_u32 s36, s32, {c}
        s_and_b32 s36, s36, 3
        v_xor_b32 v27, s36, v25
        v_lshl_add_u32 v{RA+c}, v27, 5, v26
        v_add_u32 v{RA+4+c}, 0x10000, v{RA+c}
        v_add_u32 v{RA+8+c}, 0x20000, v{RA+c}
        """)
    A(f"""
    s_lshl_b32 s36, s48, 2
    s_lshl_b32 s42, s31, 1
    s_add_u32 s36, s36, s42
    s_mul_i32 s36, s36, {72*1024}
    v_add_u32 v{vAo[0]}, s36, v{vL16}
    v_add_u32 v{vAo[1]}, {72*1024}, v{vAo[0]}
    s_lshr_b32 s41, s48, 1
    s_lshl_b32 s36, s41, 7
    s_lshl_b32 s42, s31, 6
    s_add_u32 s36, s36, s42
    s_and_b32 s43, s48, 1
    s_add_u32 s36, s36, s43
    s_lshl_b32 s36, s36, 10
    s_lshl_b32 s42, s49, 7
    s_add_u32 s36, s36, s42
    s_lshl_b32 s42, s32, 5
    s_add_u32 s36, s36, s42
    v_lshlrev_b32 v{vOut}, 11, v{vS}
    v_lshl_add_u32 v{vOut}, v{vG}, 3, v{vOut}
    v_add_u32 v{vOut}, s36, v{vOut}
    v_add_u32 v{vOut+1}, 0x8000, v{vOut}
    s_lshl_b32 s36, s31, 2
    v_mov_b32 v26, s36
    v_add_u32 v24, {LCNT}, v26
    v_mov_b32 v25, 1
    s_lshl_b32 s57, s32, 3
    s_add_u32 s57, s57, s36
    s_add_u32 s57, s57, {LCNT + oFREE}
    v_mov_b32 v{vFr}, s57
    s_lshl_b32 s36, s32, 2
    s_add_u32 s36, s36, {LCNT + oFULL}
    v_mov_b32 v{vSy}, s36
    """)
    p2_masks(A)
    A("v_mov_b32 v164, v26\nv_mov_b32 v165, v24\ns_mov_b32 s61, 0\ns_setprio 0")
    SIG = lambda L: f"""
    s_mov_b32 s61, 1
    v_mov_b32 v166, 1
    s_mov_b64 exec, 1
    ds_add_rtn_u32 v167, v165, v166
    s_waitcnt lgkmcnt(0)
    v_readfirstlane_b32 s36, v167
    s_cmp_lg_u32 s36, 3
    s_cbranch_scc1 {L}
    buffer_store_dword v166, v164, s[16:19], s66 offen sc1
    {L}:
    s_mov_b64 exec, -1
    """
    def emit_text(t):
        for ln in t.strip().split('\n'):
            ln = ln.strip()
            if ln.endswith(':'): A.label(ln[:-1])
            elif ln: A(ln)
    if OPT('sigearly'):
        A("s_waitcnt vmcnt(0)"); emit_text(SIG("P2_NF0"))
    stamp(A, 'flag')
    def seen_pre(): A(f"ds_read_b32 v3, v{vSy} offset:{oSEEN-oFULL}"); LQ.issue('se')
    A(f"v_lshlrev_b32 v0, 7, v{vS}\nv_lshl_add_u32 v0, v{vG}, 2, v0\nv_mov_b32 v2, 0\ns_mov_b32 s45, 0")
    def gate_chk(mask, lab):
        LQ.wait('se')
        A(f"""
        v_readfirstlane_b32 s36, v3
        s_or_b32 s45, s45, s36
        s_and_b32 s36, s45, {mask}
        s_cmp_lg_u32 s36, {mask}
        s_cbranch_scc1 {lab}
        """)
        A.label(f"{lab}_OK")
        pre = "" if (lab != "P2_G0" or OPT('sigearly')) else "s_waitcnt vmcnt(0)\n" + SIG("P2_NF1")
        if OPT('ldsgate'):
            cold(lab, f"""
            {pre}
            s_mov_b32 s60, 0
            {lab}_L:
            s_sleep 1
            ds_read_b32 v3, v{vSy} offset:{oSEEN-oFULL}
            s_add_u32 s60, s60, 1
            s_cmp_ge_u32 s60, {SPIN*4}
            s_cbranch_scc1 {lab}_OK
            s_waitcnt lgkmcnt(0)
            v_readfirstlane_b32 s45, v3
            s_and_b32 s36, s45, {mask}
            s_cmp_eq_u32 s36, {mask}
            s_cbranch_scc1 {lab}_OK
            s_branch {lab}_L
            """)
            return
        cold(lab, f"""
        {pre}
        s_mov_b32 s60, 0
        {lab}_L:
        s_mov_b64 exec, s[46:47]
        buffer_load_dword v2, v0, s[16:19], s41 offen sc1
        s_mov_b64 exec, -1
        s_add_u32 s60, s60, 1
        s_cmp_ge_u32 s60, {SPIN}
        s_cbranch_scc1 {lab}_OK
        s_waitcnt vmcnt(0)
        v_cmp_eq_u32 vcc, 1, v2
        s_nop 0
        s_or_b32 s45, s45, vcc_lo
        s_and_b32 s36, s45, {mask}
        s_cmp_eq_u32 s36, {mask}
        s_cbranch_scc1 {lab}_OK
        s_sleep {OPTV('psleep', 2)}
        s_branch {lab}_L
        """)
    def full_pre(): A(f"ds_read_b32 v{vSv}, v{vSy}"); LQ.issue('fu')
    def full_chk(tgt): chk(A, LQ, f"P2_FULL{tgt}", 'fu', vSy, vSv, 0, f"s_cmp_lt_u32 s36, {tgt}")
    def areg(pos): return AF + 8 * (pos % NRING)
    def aload(pos):
        return [('V', f"buffer_load_dwordx4 {vr(areg(pos)+4*b,4)}, v{vAo[b]}, s[16:19], s{ATAB[pos]} offen sc1", f"a{pos}") for b in range(2)]
    def emit(item):
        if isinstance(item, tuple):
            k, text, tag = item; A(text); (VQ if k == 'V' else LQ).issue(tag)
        elif callable(item): item()
        else: A(item)
    def breads(pos):
        s = pos % NBF; area = (pos % 9) * BLK
        R = []
        for c in range(4):
            for t in range(2):
                st, oo = (area + t * 2048) >> 16, (area + t * 2048) & 0xffff
                R.append(('L', f"ds_read_b64_tr_b16 {vr(BF[s]+4*c+2*t,2)}, v{RA+4*st+c} offset:{oo}", f"b{pos}_{c}"))
        if pos <= 8 or pos == 11:
            R.append(('L', f"v_mov_b32 v{vFv}, {pos+1}\nds_write_b32 v{vFr}, v{vFv}", 'fr'))
        return R
    def stepwait(pos, more=()):
        w = [x for x in (VQ.wait_str(f"a{pos}"), LQ.wait_str({f"b{pos}_{c}" for c in range(4)} | set(more))) if x]
        if w: A("s_waitcnt " + " ".join(w))
    def step(pos, extra):
        s = pos % NBF
        k = 0
        for c in range(4):
            for b in range(2):
                a = ACC + 4*(c*2+b)
                A(f"v_mfma_f32_16x16x32_bf16 {vr(a,4)}, {vr(BF[s]+4*c,4)}, {vr(areg(pos)+4*b,4)}, {'0' if pos == 0 else vr(a,4)}")
                tgt = (len(extra) * (c*2+b+1) + 7) // 8
                while k < tgt: emit(extra[k]); k += 1
    def full_fast(tgt):
        lab = f"P2_FULL{tgt}"
        A(f"s_cmp_lt_u32 s59, {tgt}\ns_cbranch_scc1 {lab}")
        A.label(f"{lab}_OK")
        cold(lab, f"""
        s_mov_b32 s60, 0
        {lab}_L:
        ds_read_b32 v{vSv}, v{vSy}
        s_add_u32 s60, s60, 1
        s_cmp_ge_u32 s60, {SPIN*4}
        s_cbranch_scc1 {lab}_OK
        s_waitcnt lgkmcnt(0)
        v_readfirstlane_b32 s59, v{vSv}
        s_cmp_ge_u32 s59, {tgt}
        s_cbranch_scc1 {lab}_OK
        s_sleep 1
        s_branch {lab}_L
        """)
    LA = NBF - 1
    if OPT('dbgquiet'):
        A.label("DBGQ")
        A("s_sleep 4\ns_memrealtime s[22:23]\ns_waitcnt lgkmcnt(0)\ns_sub_u32 s22, s22, s80\ns_cmp_lt_u32 s22, 1600\ns_cbranch_scc1 DBGQ")
    A("s_mov_b32 s59, 0")
    def bpre():
        full_fast(LA)
        for p in range(LA):
            for r in breads(p): emit(r)
    if OPT('bfirst'): bpre()
    seen_pre(); gate_chk('s42' if ORDER == 2 else 's43', "P2_G0")
    stamp(A, 'poll0')
    issued = min(4, NRING)
    NI = OPTV('nimm', 2)
    for p in range(NI):
        for g in aload(p): emit(g)
    if not OPT('sigearly'):
        A(f"s_cmp_lg_u32 s61, 0\ns_cbranch_scc1 P2_SIGD\ns_waitcnt vmcnt({2*NI})")
        emit_text(SIG("P2_NF2"))
        A.label("P2_SIGD")
        VQ.issue('fl', sure=False)
    for p in range(NI, issued):
        for g in aload(p): emit(g)
    if not OPT('bfirst'): bpre()
    gate = {0: {4: 's62', 8: 's56', 14: 's42'}, 1: {4: 's62', 8: 's42', 12: 's56'}, 2: {4: 's43', 8: 's62', 12: 's56'}}[ORDER]
    gstep = {g: max(g - NRING + 1, 0) for g in gate}
    if 0 in gstep.values(): seen_pre()
    pr = {0: {}, 2: {0: 3, 4: 2, 8: 1, 12: 0}, 1: {0: 2, 5: 1, 10: 0}}[OPTV('pprio', 2)]
    RF = OPTV('refresh', 2)
    refreshed = False
    for pos in range(18):
        ex = []
        if pos in pr: A(f"s_setprio {pr[pos]}")
        stamp(A, f"p{pos}")
        stepwait(pos, ['fu'] if refreshed else [])
        head = []
        if refreshed: head.append(f"v_readfirstlane_b32 s59, v{vSv}"); refreshed = False
        lim = min(pos + NRING, 18)
        while issued < lim:
            if issued in gate:
                assert pos == gstep[issued] and not ex, (pos, issued)
                ex.append(lambda g=issued: gate_chk(gate[g], f"P2_G{g}"))
            ex += aload(issued); issued += 1
        nxt = []
        if pos + LA < 18:
            nxt = [lambda t=pos + LA + 1: full_fast(t)]
            if pos % RF == RF - 1 and pos + LA + 1 < 18: nxt.append(full_pre); refreshed = True
            if pos + 1 in gstep.values(): nxt.append(seen_pre)
            nxt += breads(pos + LA)
        if pos == 15:
            ex += [('V', f"buffer_load_dwordx2 {vr(XR,2)}, v{vOut}, s[8:11], 0 offen", 'x'), ('V', f"buffer_load_dwordx2 {vr(XR+2,2)}, v{vOut+1}, s[8:11], 0 offen", 'x')]
        if pos == 16:
            nxt = nxt + [('L', f"s_xor_b32 s36, s57, 4\nv_mov_b32 v2, s36\nds_read_b32 v3, v2", 'pf')]
        mix = list(head)
        for kk in range(max(len(nxt), len(ex))):
            if kk < len(nxt): mix.append(nxt[kk])
            if kk < len(ex): mix.append(ex[kk])
        step(pos, mix)
    stamp(A, 'p2loop')
    chk(A, LQ, "P2_PART", 'pf', 2, 3, 0, "s_cmp_lt_u32 s36, 12")
    A(f"""
    s_lshl_b32 s36, s32, 1
    s_add_u32 s36, s36, s31
    s_lshl_b32 s36, s36, 11
    v_add_u32 v4, s36, v{vL16}
    """)
    for c in (1, 2, 3):
        A(f"ds_write_b128 v4, {vr(ACC+8*c,4)} offset:{(c-1)*BLK}\nds_write_b128 v4, {vr(ACC+8*c+4,4)} offset:{(c-1)*BLK+1024}")
    for c in (1, 2, 3):
        A(f"""
        s_sub_u32 s36, s32, {c}
        s_and_b32 s36, s36, 3
        s_lshl_b32 s36, s36, 1
        s_add_u32 s36, s36, s31
        s_lshl_b32 s36, s36, 11
        v_add_u32 v{5+c}, s36, v{vL16}
        """)
    A("s_mov_b32 s8, s68\ns_mov_b32 s9, s69\ns_waitcnt vmcnt(0)")
    for b in range(2):
        for q in range(2):
            x = XR + 2*b + q; a = ACC + 4*b + 2*q
            A(f"v_lshlrev_b32 v10, 16, v{x}\nv_and_b32 v11, 0xffff0000, v{x}\nv_add_f32 v{a}, v{a}, v10\nv_add_f32 v{a+1}, v{a+1}, v11")
    A("s_waitcnt lgkmcnt(0)\ns_barrier")
    for c in (1, 2, 3):
        A(f"ds_read_b128 {vr(BF[0]+8*(c-1),4)}, v{5+c} offset:{(c-1)*BLK}\nds_read_b128 {vr(BF[0]+8*(c-1)+4,4)}, v{5+c} offset:{(c-1)*BLK+1024}")
    A("s_waitcnt lgkmcnt(0)")
    for b in range(2):
        for q in range(2):
            a = ACC + 4*b + 2*q; r = BF[0] + 4*b + 2*q
            A(f"""
            v_pk_add_f32 {vr(r,2)}, {vr(r,2)}, {vr(r+8,2)}
            v_pk_add_f32 {vr(a,2)}, {vr(a,2)}, {vr(r+16,2)}
            v_pk_add_f32 {vr(a,2)}, {vr(a,2)}, {vr(r,2)}
            v_cvt_pk_bf16_f32 v{XR+2*b+q}, v{a}, v{a+1}
            """)
        A(f"buffer_store_dwordx2 {vr(XR+2*b,2)}, v{vOut+b}, s[8:11], 0 offen")
    if STAMP:
        A("s_waitcnt vmcnt(0)")
        stamp(A, 'end')
        stamp_out(A, 's3', STAMPS)
    A.label("L_END")
    A("s_endpgm")

vA0, vA1, vBe, vBo, vX = 4, 5, 6, 7, 8
vBn, vBp = 10, 11
STG = 24
def loader(A):
    RW = STG + 128
    if OPTV('lprio', 3): A(f"s_setprio {OPTV('lprio', 3)}")
    A(f"""
    """)
    if OPT('local'):
        A(f"s_and_b32 s30, s28, {OPTV('cmask', 7)}\ns_add_u32 s30, s30, s24\ns_and_b32 s30, s30, 7\ns_and_b32 s33, s26, 1")
    else:
        A("""
    s_and_b32 s30, s27, 3
    s_lshl_b32 s30, s30, 1
    s_add_u32 s30, s30, s36
    s_add_u32 s30, s30, s37
    s_lshl_b32 s38, s38, 2
    s_add_u32 s30, s30, s38
    s_and_b32 s30, s30, 7
    s_lshr_b32 s33, s27, 2
        """)
    A(f"""
    v_lshrrev_b32 v14, 3, v0
    v_and_b32 v15, 7, v0
    v_lshrrev_b32 v16, 1, v14
    v_xor_b32 v17, v15, v16
    v_lshlrev_b32 v17, 4, v17
    s_lshl_b32 s41, s33, 6
    v_xor_b32 v17, s41, v17
    s_and_b32 s36, s32, 1
    s_lshl_b32 s36, s36, 6
    s_add_u32 s36, s36, s34
    s_lshr_b32 s43, s32, 1
    s_add_u32 s36, s36, s43
    s_lshl_b32 s36, s36, 10
    v_lshlrev_b32 v18, 11, v14
    v_add3_u32 v{vA0}, v18, v17, s36
    v_xor_b32 v{vA1}, 64, v{vA0}
    v_add_u32 v{vA1}, 0x4000, v{vA1}
    v_bfe_u32 v19, v0, 1, 2
    v_and_b32 v20, 1, v16
    v_xor_b32 v19, v19, v20
    v_lshlrev_b32 v19, 5, v19
    v_and_b32 v21, 1, v0
    v_lshl_or_b32 v19, v21, 4, v19
    s_lshl_b32 s36, s33, 1
    s_xor_b32 s42, s36, s32
    s_lshl_b32 s42, s42, 4
    v_add_u32 v20, s42, v14
    s_lshl_b32 s44, s32, 12
    s_mov_b32 s15, 0x20000
    s_lshl_b32 s67, s28, 3
    s_lshl_b32 s36, s32, 1
    s_add_u32 s67, s67, s36
    s_and_b32 s66, s67, 63
    s_lshl_b32 s66, s66, 1
    s_lshr_b32 s36, s67, 6
    s_add_u32 s66, s66, s36
    s_add_u32 s66, s66, s34
    s_lshl_b32 s66, s66, 10
    s_add_u32 s67, s67, s34
    v_lshrrev_b32 v23, 5, v0
    v_and_b32 v9, 0x1f0, v{vL16}
    v_lshl_add_u32 v9, v23, 11, v9
    s_cmp_lt_u32 s28, 8
    s_cbranch_scc1 LD_QKV
    """)
    A(f"""
    s_sub_u32 s37, s28, 8
    s_mul_i32 s38, s37, 448
    s_and_b32 s39, s37, 1
    s_lshl_b32 s46, s39, 6
    s_add_u32 s46, s46, s38
    s_cmp_eq_u32 s39, 0
    s_cselect_b32 s47, 384, 0
    s_add_u32 s47, s47, s38
    v_mul_u32_u24 v{vBe}, 3584, v20
    v_add3_u32 v{vBe}, v{vBe}, v19, s46
    v_xor_b32 v{vBo}, 64, v{vBe}
    v_add_u32 v{vBo}, {8*3584}, v{vBo}
    v_lshrrev_b32 v20, 2, v0
    v_add_u32 v20, s42, v20
    v_mul_u32_u24 v20, 3584, v20
    v_bfe_u32 v22, v0, 1, 1
    v_xor_b32 v22, v22, v23
    v_lshlrev_b32 v22, 5, v22
    v_lshl_or_b32 v22, v21, 4, v22
    v_add3_u32 v{vX}, v20, v22, s47
    s_mul_i32 s45, s32, 6144
    s_lshl_b32 s46, s32, 10
    s_mov_b32 s14, {512*3584}
    s_waitcnt lgkmcnt(0)
    s_mov_b32 s8, s4
    s_mov_b32 s9, s5
    s_mov_b32 s12, s20
    s_mov_b32 s13, s21
    """)
    loader_body(A, False)
    A.label("LD_QKV"); A.reset_hist()
    A(f"""
    s_lshl_b32 s36, s28, 7
    v_mul_u32_u24 v{vBe}, 3072, v20
    v_add3_u32 v{vBe}, v{vBe}, v19, s36
    v_xor_b32 v{vBo}, 64, v{vBe}
    v_add_u32 v{vBo}, {8*3072}, v{vBo}
    s_lshl_b32 s36, s32, 2
    v_add_u32 v20, s36, v14
    v_lshrrev_b32 v22, 1, v20
    v_xor_b32 v22, v15, v22
    v_and_b32 v22, 7, v22
    v_lshlrev_b32 v22, 4, v22
    v_xor_b32 v22, s41, v22
    v_and_b32 v20, 7, v20
    v_lshl_add_u32 v22, v20, 11, v22
    s_add_u32 s36, s43, s34
    s_sub_u32 s36, s36, 16
    s_lshl_b32 s36, s36, 10
    v_add_u32 v{vX}, s36, v22
    s_mul_i32 s45, s32, 6144
    s_lshl_b32 s46, s32, 9
    s_mov_b32 s14, {512*3072}
    s_waitcnt lgkmcnt(0)
    s_mov_b32 s8, s4
    s_mov_b32 s9, s5
    s_mov_b32 s12, s6
    s_mov_b32 s13, s7
    """)
    loader_body(A, True)

def loader_body(A, qkv):
    P = 'LQ' if qkv else 'LF'
    VQ = Q(A, 'vmcnt', 63)
    RW = STG + 128
    stride = 3072 if qkv else 3584
    lstamp(A, 'lstart')
    def ld(m0, v, srd, so, tag, imm=0):
        A(f"{m0}\nbuffer_load_dwordx4 v{v}, {srd}, {so} offen{f' offset:{imm}' if imm else ''} lds"); VQ.issue(tag)
    def kcalc(st):
        A(f"s_add_u32 s31, s30, {st}\ns_and_b32 s31, s31, 7\ns_lshl_b32 s61, s31, 7\ns_mul_i32 s62, s31, {64*stride}\ns_add_u32 s63, s61, 0x8000")
    def w2(st, base, tag):
        ld(f"s_add_u32 m0, s45, {base - 256}", vBe, 's[12:15]', 's62', tag, 256)
        ld(f"s_add_u32 m0, s45, {base + 1024 - 256}", vBo, 's[12:15]', 's62', tag, 256)
        ld(f"s_add_u32 m0, s46, {base + 8192}", vX, 's[12:15]', 's62', tag)
    def dma(st, x=True, w=True):
        t = f"st{st}"
        kcalc(st)
        ab = QSL[st % 3]
        AL = [(f"s_add_u32 m0, s44, {ab + 1024*u}", v, 's[8:11]', so, t) for u, (v, so) in enumerate(((vA0, 's61'), (vA1, 's61'), (vA0, 's63'), (vA1, 's63')))]
        bb = ab + 18*K
        if qkv:
            BL = [(f"s_add_u32 m0, s45, {bb + 3072*o}", v, 's[12:15]', 's62', t, 1024*a) for o, v in enumerate((vBe, vBo)) for a in range(3)]
        else:
            BL = [(f"s_add_u32 m0, s45, {bb + 3072*o + (1024-128)*a}", v, 's[12:15]', 's62', t, 128*a) for o, v in enumerate((vBe, vBo)) for a in range(3)]
        for i in range(max(len(AL), len(BL))):
            if i < len(AL): ld(*AL[i])
            if i < len(BL): ld(*BL[i])
        if qkv:
            A(f"s_add_u32 m0, s46, {ab + 16384}\ns_mov_b32 exec_hi, 0\nbuffer_load_dwordx4 v{vX}, s[8:11], s61 offen lds\ns_mov_b32 exec_hi, -1"); VQ.issue(t)
        else:
            ld(f"s_add_u32 m0, s46, {XSL + (st % 3)*4096}", vX, 's[12:15]', 's62', t)
    dma(0)
    A(f"""
    buffer_load_dwordx4 {vr(RW,4)}, v9, s[8:11], s66 offen
    buffer_load_dwordx4 {vr(RW+4,4)}, v9, s[8:11], s66 offen offset:512
    """)
    VQ.issue('row'); VQ.issue('row')
    p2_sgprs(A)
    A(f"""
    s_mov_b32 s72, s64
    s_mov_b32 s73, s65
    s_mov_b32 s74, {512*1024}
    s_mov_b32 s75, 0x20000
    s_mov_b32 s76, s22
    s_mov_b32 s77, s23
    s_mov_b32 s78, {1792*1024}
    s_mov_b32 s79, 0x20000
    v_bfe_u32 v20, v0, 1, 2
    v_lshrrev_b32 v22, 4, v0
    v_xor_b32 v20, v20, v22
    v_lshlrev_b32 v20, 5, v20
    v_lshl_or_b32 v20, v21, 4, v20
    s_lshl_b32 s36, s49, 7
    v_add_u32 v20, s36, v20
    v_lshl_add_u32 v{vBp}, v14, 10, v20
    v_lshl_add_u32 v{vBn}, v23, 12, v{vBp}
    v_add_u32 v9, s44, v{vL16}
    v_mov_b32 v16, 0
    v_mov_b32 v17, 0
    v_lshlrev_b32 v20, 2, v0
    v_add_u32 v20, {LCNT}, v20
    ds_write_b32 v20, v16
    v_mov_b32 v21, {LCNT}
    s_lshl_b32 s36, s32, 3
    s_add_u32 s36, s36, {LCNT + oFREE}
    v_mov_b32 v12, s36
    s_lshl_b32 s36, s32, 2
    s_add_u32 s36, s36, {LCNT + oFULL}
    v_mov_b32 v13, s36
    """)
    dma(1)
    A(f"""
    s_lshl_b32 s66, s26, 4
    s_add_u32 s66, s66, s28
    s_lshl_b32 s66, s66, 7
    s_add_u32 s66, s66, {FLG}
    s_lshl_b32 s36, s32, 2
    s_add_u32 s36, s36, s66
    s_mov_b64 exec, 1
    buffer_store_dword v16, v16, s[16:19], s36 offen sc1
    s_mov_b64 exec, -1
    """)
    VQ.issue('pub')
    VQ.wait('st0')
    lstamp(A, 'lfirst')
    A("s_waitcnt lgkmcnt(0)\ns_barrier")
    if PUBST != 0: dma(2)
    VQ.wait('row')
    A("s_mov_b32 s36, 0x3f803f80")
    for q in range(8):
        A(f"v_dot2c_f32_bf16 v16, s36, v{RW+q}\nv_dot2c_f32_bf16 v17, v{RW+q}, v{RW+q}")
    for d in ("quad_perm:[1,0,3,2]", "quad_perm:[2,3,0,1]", "row_half_mirror", "row_mirror"):
        for x in (16, 17): A(f"v_add_f32_dpp v{x}, v{x}, v{x} {d} row_mask:0xf bank_mask:0xf")
    A(f"""
    v_mov_b32 v18, v16
    v_mov_b32 v19, v17
    v_permlane16_swap_b32 v18, v16
    v_permlane16_swap_b32 v19, v17
    v_add_f32 v16, v16, v18
    v_add_f32 v17, v17, v19
    v_mul_f32 v16, 0x3b000000, v16
    v_mul_f32 v17, 0x3b000000, v17
    v_fma_f32 v17, -v16, v16, v17
    v_max_f32 v17, 0, v17
    v_cvt_pk_bf16_f32 v16, v16, v17
    v_and_b32 v17, 0xffff0000, v16
    v_lshlrev_b32 v16, 16, v16
    v_add_f32 v17, 0x3727c5ac, v17
    v_cvt_pk_bf16_f32 v17, v17, v17
    v_and_b32 v17, 0xffff0000, v17
    v_sqrt_f32 v17, v17
    v_cvt_pk_bf16_f32 v17, v17, v17
    v_and_b32 v17, 0xffff0000, v17
    v_rcp_f32 v18, v17
    v_sub_f32 v16, 0, v16
    v_mov_b32 v17, v16
    v_mov_b32 v19, v18
    s_lshl_b32 s36, s67, 4
    s_add_u32 s36, s36, {ST16}
    v_lshlrev_b32 v22, 4, v23
    s_mov_b32 exec_lo, 1
    s_mov_b32 exec_hi, 1
    buffer_store_dwordx4 v[16:19], v22, s[16:19], s36 offen sc1
    s_mov_b64 exec, -1
    """)
    VQ.issue('pub')
    if PUBST == 0: dma(2)
    def pf(mult):
        A(f"""
        s_lshl_b32 s36, s2, 2
        s_add_u32 s36, s36, s32
        s_mul_i32 s42, s36, {512*mult}
        s_mul_i32 s43, s36, {1792*mult}
        v_lshlrev_b32 v20, 7, v0
        s_mov_b64 exec, {(1 << 4*mult) - 1}
        buffer_load_dword v151, v20, s[72:75], s42 offen
        s_mov_b64 exec, {(1 << 14*mult) - 1}
        buffer_load_dword v151, v20, s[76:79], s43 offen
        s_mov_b64 exec, -1
        """)
        VQ.issue('pf'); VQ.issue('pf')
    slot = {}
    nslot = [0]
    def unit(pos, direct, pace=0):
        t, wo, nat = p2_sb(pos, 's60')
        srd = 's[72:75]' if wo else 's[76:79]'
        offs = [0, 16, 4, 20] if nat else [0, 8, 16, 24]
        v = vBn if nat else vBp
        A(t + "\ns_lshl_b32 s60, s60, 15")
        if not direct: slot[pos] = STG + 16 * (nslot[0] % 9); nslot[0] += 1
        for o in range(4):
            so = 's60'
            if o: A(f"s_add_u32 s63, s60, {offs[o]*1024}"); so = 's63'
            if pace and len(VQ.q) >= pace:
                A(f"s_waitcnt vmcnt({pace-1})"); del VQ.q[:len(VQ.q) - (pace-1)]
            if direct: ld(f"s_add_u32 m0, s44, {(pos % 9)*BLK + 1024*o}", v, srd, so, f"u{pos}")
            else: A(f"buffer_load_dwordx4 {vr(slot[pos]+4*o,4)}, v{v}, {srd}, {so} offen"); VQ.issue(f"u{pos}")
    def wr(pos):
        VQ.wait(f"u{pos}")
        A(f"v_add_u32 v20, {(pos % 9)*BLK}, v9")
        for o in range(4):
            A(f"ds_write_b128 v20, {vr(slot[pos]+4*o,4)} offset:{1024*o}")
    def setfull(n):
        A(f"v_mov_b32 v22, {n}\nds_write_b32 v13, v22")
        if n == 5: lstamp(A, 'lf1')
        if n == 9: lstamp(A, 'lf9')
    def addw(off): A(f"v_mov_b32 v22, 1\ns_mov_b64 exec, 1\nds_add_u32 v21, v22 offset:{off}\ns_mov_b64 exec, -1")
    C = RW
    WS = STG + 64
    nsv = [0]
    def take(vp):
        A(f"v_cmp_eq_u32 vcc, 1, v{vp}\ns_nop 0\ns_or_b32 s98, s98, vcc_lo\nv_mov_b32 v14, s98\nds_write_b32 v13, v14 offset:{oSEEN-oFULL}")
    apn = [0]
    def apoll():
        apn[0] += 1; r = 2 + apn[0] % 2
        A(f"s_mov_b64 exec, s[46:47]\nbuffer_load_dword v{r}, v4, s[16:19], s41 offen sc1\ns_mov_b64 exec, -1"); VQ.issue(f"ap{apn[0]}")
        return r
    def service(rd, tgt, poll=True, allseen=False, full=None):
        nsv[0] += 1; lab = f"{P}_SV{nsv[0]}"
        test = (f"s_cmp_lg_u32 s98, s46" if allseen else f"{rd}\ns_cmp_lt_u32 s36, {tgt}")
        A(f"{test}\ns_cbranch_scc0 {lab}_OK\ns_mov_b32 s99, 0")
        if full is not None: A(f"s_waitcnt vmcnt(0)\nv_mov_b32 v22, {full}\nds_write_b32 v13, v22")
        A.label(lab)
        if poll:
            A(f"""
            s_cmp_eq_u32 s98, s46
            s_cbranch_scc1 {lab}_NP
            s_mov_b64 exec, s[46:47]
            buffer_load_dword v5, v4, s[16:19], s41 offen sc1
            s_mov_b64 exec, -1
            s_waitcnt vmcnt(0)
            """)
            take(5)
            A.label(f"{lab}_NP")
        A(f"s_sleep 1\ns_add_u32 s99, s99, 1\ns_cmp_ge_u32 s99, {SPIN}\ns_cbranch_scc1 {lab}_OK\n{test}\ns_cbranch_scc1 {lab}")
        A.label(f"{lab}_OK")
    def waitw(off, tgt, poll=False, full=None):
        service(f"ds_read_b32 v22, v21 offset:{off}\ns_waitcnt lgkmcnt(0)\nv_readfirstlane_b32 s36, v22", tgt, poll, full=full)
    def signal():
        A(f"""
        s_cmp_lg_u32 s32, 0
        s_cbranch_scc1 {P}_NOSIG
        s_and_b32 s36, s2, 15
        s_lshl_b32 s36, s36, 4
        v_mov_b32 v20, s36
        v_mov_b32 v22, 1
        s_mov_b64 exec, 1
        global_atomic_add v20, v22, s[70:71] sc1
        s_mov_b64 exec, -1
        """)
        A.label(f"{P}_NOSIG")
        VQ.issue('sig', sure=False)
    def cnt_issue():
        A(f"v_and_b32 v2, 0xf0, v{vL16}\nglobal_load_dword v3, v2, s[70:71] sc1"); VQ.issue('cnt')
    def gather_issue():
        A(f"""
        s_mul_i32 s36, s32, 36
        v_add_u32 v4, s36, v0
        v_lshlrev_b32 v5, 4, v4
        s_sub_u32 s41, s26, 1
        s_max_i32 s41, s41, 0
        s_sub_u32 s41, s41, s26
        s_lshl_b32 s41, s41, 11
        s_add_u32 s41, s41, {56*16}
        v_and_b32 v14, 0x70, v5
        v_and_b32 v15, 8, v4
        v_lshl_add_u32 v14, v15, 7, v14
        v_add_u32 v14, s41, v14
        v_cmp_gt_u32 vcc, 128, v4
        v_cndmask_b32 v14, v14, v5, vcc
        s_lshl_b32 s41, s26, 11
        s_add_u32 s41, s41, {ST16}
        v_add_u32 v14, s41, v14
        v_add_u32 v5, {LROW}, v5
        s_lshl_b32 s42, s28, 14
        s_lshl_b32 s36, s32, 8
        s_add_u32 s42, s42, s36
        s_add_u32 s42, s42, {CSP}
        v_lshrrev_b32 v23, 4, v0
        v_lshl_add_u32 v23, v23, 12, v2
        s_add_u32 s36, s36, {LCS}
        v_add_u32 v15, s36, v2
        """)
        VQ.wait('cnt')
        A(f"s_mov_b32 s61, 0\ns_branch {P}_CNT_T")
        A.label(f"{P}_CNT")
        A(f"""
        s_sleep 4
        global_load_dword v3, v2, s[70:71] sc1
        s_add_u32 s61, s61, 1
        s_cmp_ge_u32 s61, {SPIN}
        s_cbranch_scc1 {P}_CNTOK
        s_waitcnt vmcnt(0)
        """)
        A.label(f"{P}_CNT_T")
        A(f"v_cmp_gt_u32 vcc, 16, v3\ns_nop 1\ns_cbranch_vccnz {P}_CNT")
        A.label(f"{P}_CNTOK")
        lstamp(A, 'lcnt')
        A(f"s_mov_b32 exec_hi, 15\nbuffer_load_dwordx4 v[16:19], v14, s[16:19], 0 offen sc1\ns_mov_b32 exec_hi, -1"); VQ.issue('rs')
        for o in range(4):
            A(f"buffer_load_dwordx4 {vr(C+4*o,4)}, v23, s[16:19], s42 offen offset:{1024*o} sc1"); VQ.issue('cs')
    def gather_finish():
        VQ.wait('rs')
        A(f"s_mov_b32 exec_hi, 15\nds_write_b128 v5, v[16:19]")
        if qkv: A(f"v_lshlrev_b32 v4, 2, v4\nv_add_u32 v4, {LSM}, v4\nds_write_b32 v4, v16\nds_write_b32 v4, v18 offset:576")
        A("s_mov_b32 exec_hi, -1")
        VQ.wait('cs')
        for q in range(4):
            A(f"v_add_f32 v{C+q}, v{C+q}, v{C+4+q}\nv_add_f32 v{C+8+q}, v{C+8+q}, v{C+12+q}")
        for q in range(4): A(f"v_add_f32 v{C+q}, v{C+q}, v{C+8+q}")
        for sw in ("v_permlane32_swap_b32", "v_permlane16_swap_b32"):
            for q in range(4): A(f"v_mov_b32 v{C+4+q}, v{C+q}")
            for q in range(4): A(f"{sw} v{C+4+q}, v{C+q}")
            for q in range(4): A(f"v_add_f32 v{C+q}, v{C+q}, v{C+4+q}")
        A(f"ds_write_b128 v15, {vr(C,4)}")
        addw(8)
        lstamp(A, 'lstat')
    def poll_setup():
        p2_masks(A)
        A(f"""
        v_and_b32 v4, 15, v0
        v_lshlrev_b32 v4, 7, v4
        v_lshrrev_b32 v5, 4, v0
        v_lshl_add_u32 v4, v5, 2, v4
        s_mov_b32 s98, 0
        v_mov_b32 v2, 0
        v_mov_b32 v3, 0
        v_mov_b32 v5, 0
        """)
    NE = OPTV('nearlyq' if qkv else 'nearlyf', 0)
    early = set()
    TR = OPTV('trickq' if qkv else 'trickf', 0)
    GE = OPT('gearly')
    for st in range(6):
        VQ.wait({f"st{st+1}"} | ({'pub'} if st == PUBST else set()) | ({'st7'} if st == 5 else set()))
        A("s_barrier")
        if st == PUBST: signal()
        if st == 4 and GE: cnt_issue()
        if st + 3 <= 7: dma(st + 3)
        if st == OPTV('pfst', 1) and (qkv or OPT('pfboth')): pf(1 if OPT('pfboth') else 2)
        if st == OPTV('touch', -1):
            sb0 = "s_lshl_b32 s42, s28, 1" if qkv else "s_mul_i32 s42, s28, 7\ns_sub_u32 s42, s42, 40"
            A(f"""
            {sb0}
            s_lshl_b32 s36, s26, 2
            s_add_u32 s36, s36, s32
            s_mul_i32 s36, s36, 144
            s_add_u32 s42, s42, s36
            s_lshl_b32 s42, s42, 10
            s_add_u32 s43, s42, {72*1024}
            v_lshlrev_b32 v20, 7, v0
            s_mov_b32 exec_lo, {0xffff if qkv else -1}
            s_mov_b32 exec_hi, {0 if qkv else 0xffffff}
            buffer_load_dword v150, v20, s[16:19], s42 offen sc1
            buffer_load_dword v150, v20, s[16:19], s43 offen sc1
            s_mov_b64 exec, -1
            """)
            VQ.issue('pf'); VQ.issue('pf')
        if st == 4:
            if GE: gather_issue()
            else: cnt_issue()
        if 5 - TR <= st <= 4:
            p = [8, 7, 6, 5][4 - st]; unit(p, p == 8); early.add(p)
    lstamp(A, 'lbar5')
    if not GE: gather_issue()
    unit(0, True); gather_finish(); poll_setup()
    for p in (1, 8, 5, 6, 7):
        if p not in early: unit(p, p in (1, 8))
    waitw(oR + 24, 8)
    for p in (2, 3, 4): unit(p, True)
    for p in range(9, 9 + NE): unit(p, False)
    VQ.wait({'u0', 'u1', 'u8', 'u2', 'u3', 'u4'})
    setfull(5)
    waitw(oR + 28, 8)
    for p in (5, 6, 7): wr(p)
    setfull(9)
    A("s_waitcnt lgkmcnt(0)")
    NWIN = OPTV('win', 0); PC = OPTV('pace', 3)
    if OPTV('wwait', 0): waitw(OPTV('wwait', 0) - 1, 4)
    for p in range(9 + NE, 9 + NE + NWIN):
        r = apoll()
        unit(p, False, PC)
        assert PC <= 4
        take(r)
    lstamp(A, 'lwin')
    pend = None; prev = None
    for pos in range(9, 18):
        service("ds_read_b64 v[16:17], v12\ns_waitcnt lgkmcnt(0)\nv_min_u32 v16, v16, v17\nv_readfirstlane_b32 s36, v16", pos - 8, full=(pend + 1 if pend is not None else None))
        if pos in slot:
            wr(pos)
            if pend is not None:
                VQ.wait(pendtag); pend = None
                if prev is not None: take(prev); prev = None
            setfull(pos + 1)
        else:
            cur = apoll() if not OPT('noap') else None
            unit(pos, True)
            if pend is not None:
                VQ.wait(pendtag); setfull(pend + 1)
                if prev is not None: take(prev)
            prev = cur; pend = pos; pendtag = {f"u{pos}"}
    if pend is not None: VQ.wait(pendtag); setfull(pend + 1)
    lstamp(A, 'lu17')
    service("", 0, allseen=True)
    A("s_waitcnt lgkmcnt(0)")
    if STAMP: stamp_out(A, 's32', STAMPS + 0x10000)
    A("s_endpgm")

def main():
    out = sys.argv[1]
    A = Asm()
    A.nopk = lambda ins: 'op_sel' in ins.mods
    A.raw(HEADER.rstrip())
    if STAMP: A.raw("; stamps: " + " ".join(SSET) + "\n; lstamps: " + " ".join(LSET) + ("\n; local" if OPT('local') else ""))
    A.raw(f"; @launch grid=(256,1,1) block=(768,1,1) lds={LDS_TOTAL}")
    A.raw('.amdgcn_target "amdgcn-amd-amdhsa--gfx950"\n.text')
    prologue(A)
    phase2(A)
    emit_cold(A)
    A.raw(f""".section .rodata,"a"
.p2align 6
.amdhsa_kernel {NAME}_kernel
  .amdhsa_next_free_vgpr {NVGPR}
  .amdhsa_next_free_sgpr 100
  .amdhsa_accum_offset {NVGPR}
  .amdhsa_group_segment_fixed_size 0
  .amdhsa_kernarg_size 72
  .amdhsa_user_sgpr_count 2
  .amdhsa_user_sgpr_kernarg_segment_ptr 1
  .amdhsa_system_sgpr_workgroup_id_x 1
.end_amdhsa_kernel""")
    open(out, "w").write(A.text())
    print("nops inserted:", A.nops)
main()
```
